```python
import torch

def _softmax(x, axis=-1):
    return torch.softmax(x, dim=axis)
def _gelu(x):
    return torch.nn.functional.gelu(x, approximate="tanh")
def _silu(x):
    return torch.nn.functional.silu(x)
def _sigmoid(x):
    return torch.sigmoid(x)
def _layernorm(x, axis=-1, eps=1e-5):
    m = x.mean(dim=axis, keepdim=True)
    v = x.var(dim=axis, keepdim=True, unbiased=False)
    return (x - m) / torch.sqrt(v + eps)
def _scatter_add(tgt, idx, src, axis=0):
    return tgt.clone().index_add_(axis, idx, src)
def _segment_sum(src, seg, n):
    out = torch.zeros((n,) + src.shape[1:], dtype=src.dtype)
    return out.index_add_(0, seg, src)
def _pad(x, pw):
    flat = tuple(v for pair in reversed(pw) for v in pair)
    return torch.nn.functional.pad(x, flat)

kernel_name = 'recurrent_scan__spectral_gfnet__dense_activation_relu__prompt'

def setup_inputs():

    _w = (lambda a: (lambda t: t.to(torch.bfloat16) if t.is_floating_point() else t)(torch.as_tensor(a)))
    def _A_setup():
        B, S, D = 1, 2048, 448
        Df = D // 2 + 1
        return {
            "x": _w((lambda *s: torch.randn(*s, dtype=torch.bfloat16) * 0.05)(B, S, D)),
            "w_r": _w((lambda *s: torch.randn(*s, dtype=torch.bfloat16) * 0.1)(S, Df) * 0.02),
            "w_i": _w((lambda *s: torch.randn(*s, dtype=torch.bfloat16) * 0.1)(S, Df) * 0.02),
        }
    _A_in = _A_setup()

    def _B_setup():
        B, S, D, Dff = 1, 2048, 448, 1792
        return {
            "x": _w((lambda *s: torch.randn(*s, dtype=torch.bfloat16) * 0.05)(B, S, D)),
            "w1": _w((lambda *s: torch.randn(*s, dtype=torch.bfloat16) * 0.05)(D, Dff)),
            "w2": _w((lambda *s: torch.randn(*s, dtype=torch.bfloat16) * 0.05)(Dff, D)),
        }
    _B_in = _B_setup()

    return {
        "A_x": _A_in["x"],
        "A_w_r": _A_in["w_r"],
        "A_w_i": _A_in["w_i"],
        "B_x": _B_in["x"],
        "B_w1": _B_in["w1"],
        "B_w2": _B_in["w2"],
    }

def reference(A_x, A_w_r, A_w_i, B_x, B_w1, B_w2):
    def _A_ref(x, w_r, w_i):
        B, S, D = x.shape
        X = (lambda x, axes=(-2,-1): torch.fft.rfft2(x.float(), dim=axes))(x, axes=(-2, -1))
        W = w_r + 1j * w_i
        X = X * W
        y = (lambda x, s, axes=(-2,-1): torch.fft.irfft2(x, s=s, dim=axes).to(torch.bfloat16))(X, (S, D), axes=(-2, -1))
        return y

    def _B_ref(x, w1, w2):
        h = torch.einsum("bsd,df->bsf", x, w1)
        zero = torch.zeros_like(h)
        h = torch.maximum(h, zero)
        return torch.einsum("bsf,fd->bsd", h, w2)

    x = A_x
    xn = _layernorm(x, axis=-1)
    s = _A_ref(xn, A_w_r, A_w_i)
    g = _silu(_B_ref(xn, B_w1, B_w2))
    return x + s * g
```

```python
import math, struct
def bf16(x):
    u = struct.unpack('<I', struct.pack('<f', x))[0]
    return ((u + 0x7fff + ((u >> 16) & 1)) >> 16) & 0xffff
def f32(x): return struct.unpack('<I', struct.pack('<f', x))[0]
H_OFF=0x0; H_SZ=0x700000
X1_OFF=0x700000; X1_SZ=0x1C0000
WT_OFF=0x8C0000; WT_SZ=225*8192
YT_OFF=0xB00000; YT_SZ=0x1C0000
P_OFF=0xD00000; P_SZ=4*0x1C0000
class Asm:
    def __init__(s): s.l=[]
    def __call__(s, t):
        for x in t.strip('\n').split('\n'): s.l.append('  '+x.strip() if not x.strip().endswith(':') else x.strip())
    def text(s): return '\n'.join(s.l)+'\n'
def srd(a, d, base, off, size):
    if off:
        a(f"s_add_u32 s{d}, s{base}, {hex(off)}\ns_addc_u32 s{d+1}, s{base+1}, 0")
    else:
        a(f"s_mov_b32 s{d}, s{base}\ns_mov_b32 s{d+1}, s{base+1}")
    a(f"s_mov_b32 s{d+2}, {hex(size)}\ns_mov_b32 s{d+3}, 0x20000")
def tab_srd(a, d, tag):
    a(f"s_getpc_b64 s[{d}:{d+1}]\nLpc_{tag}:\ns_add_u32 s{d}, s{d}, ftab-Lpc_{tag}\ns_addc_u32 s{d+1}, s{d+1}, 0\ns_mov_b32 s{d+2}, {448*896}\ns_mov_b32 s{d+3}, 0x20000")
def ftable():
    o=[]
    for i in range(448): o.append(f".set T{i}, {hex(bf16(math.cos(2*math.pi*i/448)))}")
    o.append("""
.altmacro
.macro E2 a, b
.long T\\a | (T\\b << 16)
.endm
.p2align 8
.type ftab,@object
ftab:
.set tn, 0
.rept 448
E2 0, %((tn*224) % 448)
.set tf, 1
.rept 223
E2 %((tn*tf) % 448), %((tn*tf+112) % 448)
.set tf, tf+1
.endr
.set tn, tn+1
.endr
.size ftab, 401408
.noaltmacro
""")
    return '\n'.join(o)
def desc(name, vg, acc=None, sg=96):
    acc = acc or (vg+3)//4*4
    return f""".p2align 6
.amdhsa_kernel {name}
  .amdhsa_next_free_vgpr {vg}
  .amdhsa_next_free_sgpr {sg}
  .amdhsa_accum_offset {acc}
  .amdhsa_group_segment_fixed_size 0
  .amdhsa_kernarg_size 72
  .amdhsa_user_sgpr_count 2
  .amdhsa_user_sgpr_kernarg_segment_ptr 1
  .amdhsa_system_sgpr_workgroup_id_x 1
.end_amdhsa_kernel
"""
def head(name): return f".globl {name}\n.p2align 8\n.type {name},@function\n{name}:\n"
```

```python
from common import *
ST=36864; CSP=147456; CSF=152576; RST=153216; K1_LDS=154240
def swap23(a, d, s, t):
    a(f"v_lshrrev_b32 v{t}, 1, v{s}\nv_xor_b32 v{t}, v{t}, v{s}\nv_and_b32 v{t}, 4, v{t}\nv_mul_u32_u24 v{t}, 3, v{t}\nv_xor_b32 v{d}, v{s}, v{t}")
def gemm(a, isF):
    T='F' if isF else 'W'
    strideB = 896 if isF else 3584
    if isF:
        tab_srd(a,12,'k1'); srd(a,16,6,X1_OFF,X1_SZ); a("s_sub_u32 s21, s21, 12")
    else:
        srd(a,12,4,0,448*3584); srd(a,16,6,H_OFF,H_SZ)
    a(f"""v_lshrrev_b32 v4, 2, v1
    v_mul_u32_u24 v4, {strideB}, v4
    v_and_b32 v5, 3, v1
    v_lshl_add_u32 v4, v5, 4, v4
    s_mul_i32 s25, s22, {16*strideB}
    s_mul_i32 s28, s21, 320
    s_add_u32 s25, s25, s28
    s_lshl_b32 s26, s22, 12
    s_mul_i32 s29, s22, 5120
    s_add_u32 s29, s29, 16384
    s_mov_b32 s38, {ST}
    s_mov_b32 s39, {-3*ST}
    s_mov_b32 s27, 0""")
    def dma():
        g=[]
        for i in range(4):
            g.append(f"s_add_u32 m0, s26, {i*1024}\ns_add_u32 s28, s24, {i*8*28672}\nbuffer_load_dwordx4 v{2+(i&1)}, s[8:11], s28 offen lds")
        for b in range(5):
            g.append(f"s_add_u32 m0, s29, {b*1024}\ns_add_u32 s28, s25, {b*64}\nbuffer_load_dwordx4 v4, s[12:15], s28 offen lds")
        g.append(f"""s_add_u32 s27, s27, 1
        s_add_u32 s24, s24, 128
        s_cmp_ge_u32 s27, 7
        s_cselect_b32 s24, 0x40000000, s24
        s_add_u32 s25, s25, {64*strideB}
        s_and_b32 s28, s27, 3
        s_cselect_b32 s28, s38, s39
        s_add_u32 s26, s26, s28
        s_add_u32 s29, s29, s28""")
        return g
    a(f"Lpro{T}:")
    for x in dma(): a(x)
    a(f"s_cmp_lt_u32 s27, 4\ns_cbranch_scc1 Lpro{T}")
    a("v_and_b32 v5, 31, v1")
    if isF: swap23(a,5,5,6)
    a("""v_lshrrev_b32 v6, 5, v1
    v_bfe_u32 v7, v5, 1, 3
    v_lshlrev_b32 v5, 7, v5
    s_lshl_b32 s28, s22, 12
    v_add_u32 v5, s28, v5""")
    for t in range(4):
        a(f"""s_add_u32 s28, s22, {t}
        s_and_b32 s28, s28, 3
        s_lshl_b32 s30, s28, 1
        v_add_u32 v16, s30, v6
        v_xor_b32 v16, v16, v7
        v_lshl_add_u32 v{8+t}, v16, 4, v5
        s_mul_i32 s{32+t}, s28, 5120""")
    a("""v_lshrrev_b32 v16, 5, v1
    v_lshlrev_b32 v16, 3, v16
    v_bfe_u32 v17, v1, 2, 2
    v_add_u32 v16, v16, v17
    v_lshlrev_b32 v16, 6, v16
    v_bfe_u32 v17, v1, 4, 1
    v_and_b32 v18, 3, v1
    v_lshl_add_u32 v17, v17, 2, v18
    v_lshlrev_b32 v17, 2, v17""")
    if not isF: swap23(a,17,17,18)
    a("v_lshl_add_u32 v16, v17, 1, v16\nv_add_u32 v16, 16384, v16")
    for t in range(4): a(f"v_add_u32 v{12+t}, s{32+t}, v16")
    a("v_mov_b32 v79, 0x3f803f80")
    for r in list(range(72,79))+list(range(80,160)): a(f"v_mov_b32 v{r}, 0")
    def reads(t):
        bf=t&1; A=24+4*bf; B=32+20*bf
        g=[f"ds_read_b128 v[{A}:{A+3}], v{8+t}"]
        for b in range(5):
            g.append(f"ds_read_b64_tr_b16 v[{B+4*b}:{B+4*b+1}], v{12+t} offset:{b*1024}")
            g.append(f"ds_read_b64_tr_b16 v[{B+4*b+2}:{B+4*b+3}], v{12+t} offset:{b*1024+256}")
        return g
    a("s_mov_b32 s30, 0\ns_waitcnt vmcnt(27)\ns_barrier")
    for x in reads(0): a(x)
    a(f"Lloop{T}:")
    for t in range(4):
        bf=t&1; A=24+4*bf; B=32+20*bf
        fill=[]
        if t<3:
            a("s_waitcnt lgkmcnt(0)")
            fill+=reads(t+1)
        else:
            a(f"""s_add_u32 s30, s30, 1
            s_and_b32 s28, s30, 3
            s_cselect_b32 s28, s38, s39""")
            a("v_add_u32 v8, s28, v8\nv_add_u32 v12, s28, v12")
            a("s_waitcnt vmcnt(18) lgkmcnt(0)\ns_barrier")
            fill+=reads(0)
            fill+=[f"v_add_u32 v{r}, s28, v{r}" for r in (9,13,10,14,11,15)]
            fill+=dma()
        dots=[]
        for j in range(4):
            dots+= [f"v_dot2c_f32_bf16 v72, v{A+j}, v79", f"v_dot2c_f32_bf16 v73, v{A+j}, v{A+j}"]
        if t==0:
            for j in range(4):
                for b in range(5): dots.append(f"v_dot2c_f32_bf16 v{74+b}, v{B+4*b+j}, v79")
        fill+=dots
        n=len(fill); k=0
        for b in range(5):
            D=80+16*b
            if isF: a(f"v_mfma_f32_32x32x16_bf16 v[{D}:{D+15}], v[{A}:{A+3}], v[{B+4*b}:{B+4*b+3}], v[{D}:{D+15}]")
            else:   a(f"v_mfma_f32_32x32x16_bf16 v[{D}:{D+15}], v[{B+4*b}:{B+4*b+3}], v[{A}:{A+3}], v[{D}:{D+15}]")
            e=(n*(b+1)+4)//5
            while k<e: a(fill[k]); k+=1
    a(f"s_cmp_lt_u32 s30, 7\ns_cbranch_scc1 Lloop{T}")
    a("v_and_b32 v5, 31, v1")
    if not isF: swap23(a,5,5,6)
    a(f"""v_lshrrev_b32 v6, 5, v0
    v_mul_u32_u24 v6, 640, v6
    v_lshl_add_u32 v6, v5, 2, v6
    v_add_u32 v6, {CSP}, v6""")
    for b in range(5): a(f"ds_write_b32 v6, v{74+b} offset:{b*128}")
    a(f"""v_mov_b32 v20, v72
    v_mov_b32 v21, v73
    s_nop 1
    v_permlane32_swap_b32 v72, v20
    v_permlane32_swap_b32 v73, v21
    s_nop 1
    v_add_f32 v72, v72, v20
    v_add_f32 v73, v73, v21
    v_mul_f32 v72, {hex(f32(1/448))}, v72
    v_mul_f32 v73, {hex(f32(1/448))}, v73
    v_fma_f32 v73, -v72, v72, v73
    v_max_f32 v73, 0, v73
    v_cvt_pk_bf16_f32 v72, v72, v73
    v_and_b32 v73, 0xffff0000, v72
    v_lshlrev_b32 v72, 16, v72
    v_add_f32 v73, {hex(f32(1e-5))}, v73
    v_cvt_pk_bf16_f32 v73, v73, v73
    v_and_b32 v73, 0xffff0000, v73
    v_sqrt_f32 v73, v73
    s_nop 0
    v_cvt_pk_bf16_f32 v73, v73, v73
    v_and_b32 v73, 0xffff0000, v73
    v_rcp_f32 v76, v73
    s_waitcnt vmcnt(0) lgkmcnt(0)
    s_barrier
    v_lshlrev_b32 v6, 2, v0
    v_add_u32 v7, {CSP}, v6""")
    for i in range(8): a(f"ds_read_b32 v{24+i}, v7 offset:{i*640}")
    if isF:
        a(f"""v_and_b32 v5, 31, v1""")
        swap23(a,5,5,20)
        a(f"""v_mul_f32 v77, v76, v72
        s_lshl_b32 s28, s22, 8
        s_add_u32 s28, s28, {RST}
        v_lshl_add_u32 v5, v5, 2, s28
        ds_write_b32 v5, v76
        ds_write_b32 v5, v77 offset:128""")
        a("s_waitcnt lgkmcnt(2)")
    else: a("s_waitcnt lgkmcnt(0)")
    a("""v_add_f32 v24, v24, v25
    v_add_f32 v26, v26, v27
    v_add_f32 v28, v28, v29
    v_add_f32 v30, v30, v31
    v_add_f32 v24, v24, v26
    v_add_f32 v28, v28, v30
    v_add_f32 v24, v24, v28
    v_cmp_gt_u32 vcc, 160, v0
    s_and_saveexec_b64 s[36:37], vcc""")
    a(f"v_add_u32 v7, {CSF}, v6\nds_write_b32 v7, v24\ns_mov_b64 exec, s[36:37]\ns_waitcnt lgkmcnt(0)\ns_barrier")
    a("v_lshrrev_b32 v6, 5, v1")
    if not isF:
        a(f"v_lshlrev_b32 v6, 5, v6\nv_add_u32 v6, {CSF}, v6\nv_lshlrev_b32 v7, 4, v1")
        a("s_lshl_b32 s28, s20, 2\ns_add_u32 s28, s28, s22\ns_mul_i32 s28, s28, 112\ns_mul_i32 s30, s21, 10\ns_add_u32 s28, s28, s30\ns_lshl_b32 s28, s28, 10\ns_mul_i32 s31, s21, 5")
        def csr(b):
            C=24+16*(b&1)
            for u in range(2):
                for q in range(2): a(f"ds_read_b128 v[{C+8*u+4*q}:{C+8*u+4*q+3}], v6 offset:{b*128+u*64+q*16}")
        csr(0)
        for b in range(5):
            C=24+16*(b&1); D=80+16*b
            if b<4: csr(b+1); a("s_waitcnt lgkmcnt(4)")
            else: a("s_waitcnt lgkmcnt(0)")
            for j in range(0,16,2): a(f"v_pk_fma_f32 v[{D+j}:{D+j+1}], v[{C+j}:{C+j+1}], v[72:73], v[{D+j}:{D+j+1}] op_sel_hi:[1,0,1] neg_lo:[0,1,0] neg_hi:[0,1,0]")
            for j in range(0,16,2): a(f"v_pk_mul_f32 v[{D+j}:{D+j+1}], v[{D+j}:{D+j+1}], v[76:77] op_sel_hi:[1,0]")
            for j in range(8): a(f"v_cvt_pk_bf16_f32 v{D+j}, v{D+2*j}, v{D+2*j+1}")
            for j in range(8): a(f"v_pk_max_i16 v{D+j}, v{D+j}, 0")
            a(f"buffer_store_dwordx4 v[{D}:{D+3}], v7, s[16:19], s28 offen offset:{(b&1)*2048} STF")
            a(f"buffer_store_dwordx4 v[{D+4}:{D+7}], v7, s[16:19], s28 offen offset:{(b&1)*2048+1024} STF")
            if b&1: a("s_add_u32 s28, s28, 4096")
            if b==0: a("s_cmp_eq_u32 s21, 11\ns_cbranch_scc1 Lend1")
    else:
        a(f"""s_lshl_b32 s28, s22, 8
        s_add_u32 s28, s28, {RST}
        v_lshl_add_u32 v7, v6, 5, s28""")
        for z in range(2):
            for u in range(2):
                for q in range(2): a(f"ds_read_b128 v[{24+16*z+8*u+4*q}:{24+16*z+8*u+4*q+3}], v7 offset:{z*128+u*64+q*16}")
        a(f"v_and_b32 v5, 31, v1\nv_lshlrev_b32 v7, 2, v5\nv_add_u32 v7, {CSF}, v7")
        for b in range(5): a(f"ds_read_b32 v{60+2*b}, v7 offset:{b*128}")
        a("""v_lshlrev_b32 v7, 12, v5
        v_lshl_add_u32 v7, v6, 4, v7
        s_mul_i32 s28, s21, 655360
        s_lshl_b32 s30, s20, 8
        s_add_u32 s28, s28, s30
        s_lshl_b32 s30, s22, 6
        s_add_u32 s28, s28, s30
        s_waitcnt lgkmcnt(0)""")
        for b in range(5):
            D=80+16*b
            for j in range(0,16,2): a(f"v_pk_mul_f32 v[{D+j}:{D+j+1}], v[{D+j}:{D+j+1}], v[{24+j}:{25+j}]")
            for j in range(0,16,2): a(f"v_pk_fma_f32 v[{D+j}:{D+j+1}], v[{40+j}:{41+j}], v[{60+2*b}:{61+2*b}], v[{D+j}:{D+j+1}] op_sel_hi:[1,0,1] neg_lo:[0,1,0] neg_hi:[0,1,0]")
            for j in range(8): a(f"v_cvt_pk_bf16_f32 v{D+j}, v{D+2*j}, v{D+2*j+1}")
            a(f"buffer_store_dwordx4 v[{D}:{D+3}], v7, s[16:19], s28 offen STF")
            a(f"buffer_store_dwordx4 v[{D+4}:{D+7}], v7, s[16:19], s28 offen offset:32 STF")
            if b<4: a("s_add_u32 s28, s28, 131072")
    a("s_endpgm")
def wtrans(a):
    a("s_load_dwordx4 s[24:27], s[0:1], 8\ns_waitcnt lgkmcnt(0)")
    srd(a,8,24,0,921600); srd(a,12,26,0,921600); srd(a,16,6,WT_OFF,WT_SZ)
    a("""v_lshlrev_b32 v2, 2, v1
    v_min_u32 v2, 221, v2
    v_lshlrev_b32 v3, 13, v2
    v_lshlrev_b32 v2, 1, v2
    s_lshr_b32 s24, s20, 2
    s_and_b32 s25, s20, 3
    s_lshl_b32 s26, s24, 4
    s_lshl_b32 s27, s22, 2
    s_add_u32 s26, s26, s27
    s_lshl_b32 s28, s25, 8
    s_add_u32 s28, s28, s26
    s_mul_i32 s28, s28, 450
    s_lshl_b32 s29, s24, 6
    s_lshl_b32 s30, s25, 4
    s_add_u32 s29, s29, s30
    s_add_u32 s29, s29, s27
    s_lshl_b32 s29, s29, 5
    v_mov_b32 v4, 0x05040100
    v_mov_b32 v5, 0x07060302""")
    for u in range(4):
        for j in range(8):
            off=(u+64*(16*(j>>2)+(j&3)))*450
            a(f"s_add_u32 s30, s28, {off}")
            a(f"buffer_load_dwordx2 v[{8+u*32+j*4}:{9+u*32+j*4}], v2, s[8:11], s30 offen")
            a(f"buffer_load_dwordx2 v[{10+u*32+j*4}:{11+u*32+j*4}], v2, s[12:15], s30 offen")
        if u==2: wproc(a,0,"vmcnt(32)")
    wproc(a,1,"vmcnt(40)"); wproc(a,2,"vmcnt(32)"); wproc(a,3,"vmcnt(16)")
    a("s_endpgm")
def wproc(a,u,w):
    a(f"s_waitcnt {w}")
    for df in range(4):
        O=136+8*df
        for j in range(8):
            R=8+u*32+j*4+(df>>1)
            a(f"v_perm_b32 v{O+j}, v{R+2}, v{R}, v{4+(df&1)}")
        a(f"s_add_u32 s31, s29, {df*8192+u*32}")
        a(f"buffer_store_dwordx4 v[{O}:{O+3}], v3, s[16:19], s31 offen STF")
        a(f"buffer_store_dwordx4 v[{O+4}:{O+7}], v3, s[16:19], s31 offen offset:16 STF")
    a("s_nop 1")
def k1():
    a=Asm()
    a("""s_cmp_ge_u32 s2, 256
    s_cbranch_scc1 Lend1
    s_load_dwordx2 s[8:9], s[0:1], 0
    s_load_dwordx2 s[4:5], s[0:1], 32
    s_load_dwordx2 s[6:7], s[0:1], 64
    v_lshrrev_b32 v2, 6, v0
    v_and_b32 v1, 63, v0
    v_readfirstlane_b32 s22, v2
    s_lshr_b32 s28, s2, 3
    s_and_b32 s20, s2, 3
    s_lshl_b32 s20, s20, 2
    s_and_b32 s29, s28, 3
    s_add_u32 s20, s20, s29
    s_lshr_b32 s21, s28, 2
    s_and_b32 s29, s2, 4
    s_lshl_b32 s29, s29, 1
    s_add_u32 s21, s21, s29
    s_mov_b32 s10, 0x1C0000
    s_mov_b32 s11, 0x20000
    v_lshrrev_b32 v2, 3, v1
    v_mul_u32_u24 v2, 28672, v2
    v_and_b32 v3, 7, v1
    v_lshrrev_b32 v4, 4, v1
    v_xor_b32 v3, v3, v4
    v_lshl_add_u32 v2, v3, 4, v2
    v_xor_b32 v3, 64, v2
    s_and_b32 s28, s22, 1
    s_lshl_b32 s28, s28, 10
    s_lshr_b32 s29, s22, 1
    s_add_u32 s28, s28, s29
    s_lshl_b32 s29, s20, 1
    s_add_u32 s28, s28, s29
    s_mul_i32 s24, s28, 896
    s_waitcnt lgkmcnt(0)
    s_cmp_eq_u32 s21, 15
    s_cbranch_scc1 Lwt
    s_cmp_ge_u32 s21, 12
    s_cbranch_scc1 LgF""")
    gemm(a,False)
    a("LgF:"); gemm(a,True)
    a("Lwt:"); wtrans(a)
    a("Lend1:\ns_endpgm")
    return a.text()
```

```python
from common import *
from k1 import swap23
K2_LDS=65536
def mf16(a,D,A,B,C=None):
    c = f"v[{D}:{D+3}]" if C is None else C
    a(f"v_mfma_f32_16x16x32_bf16 v[{D}:{D+3}], v[{A}:{A+3}], v[{B}:{B+3}], {c}")
def fft(a):
    srd(a,8,6,X1_OFF,X1_SZ); srd(a,12,6,WT_OFF,WT_SZ); srd(a,16,6,YT_OFF,YT_SZ)
    a(f"""s_sub_u32 s20, s2, 256
    s_lshl_b32 s24, s20, 13
    s_add_u32 s25, s24, 4096
    s_mov_b32 s26, {hex(f32(2/917504))}
    s_cmp_eq_u32 s20, 224
    s_cselect_b32 s24, 4096, s24
    s_cselect_b32 s27, 0, s20
    s_cmp_eq_u32 s27, 0
    s_cselect_b32 s25, 0x40000000, s25
    s_cselect_b32 s26, {hex(f32(1/917504))}, s26
    v_and_b32 v2, 15, v1
    v_lshrrev_b32 v3, 4, v1
    v_lshlrev_b32 v4, 7, v2
    v_lshl_add_u32 v5, v3, 4, v4
    v_lshlrev_b32 v6, 5, v0
    s_lshl_b32 s27, s20, 13""")
    for blk in range(2):
        for ks in range(2):
            a(f"buffer_load_dwordx4 v[{8+blk*8+ks*4}:{11+blk*8+ks*4}], v5, s[8:11], s24 offen offset:{blk*2048+ks*64}")
            a(f"buffer_load_dwordx4 v[{24+blk*8+ks*4}:{27+blk*8+ks*4}], v5, s[8:11], s25 offen offset:{blk*2048+ks*64}")
    a("buffer_load_dwordx4 v[40:43], v6, s[12:15], s27 offen\nbuffer_load_dwordx4 v[44:47], v6, s[12:15], s27 offen offset:16")
    a("""v_cvt_f32_u32 v152, v2
    v_cvt_f32_u32 v153, v3
    s_lshl_b32 s28, s22, 4
    v_cvt_f32_u32 v155, s28
    v_add_f32 v154, v152, v155""")
    def cs4(step, rev, C, S, N):
        for j in range(4):
            a(f"v_cos_f32 v{160+j}, v{rev}\nv_sin_f32 v{164+j}, v{rev}\nv_add_f32 v{rev}, v{rev}, v{step}")
        for j in range(2):
            a(f"v_cvt_pk_bf16_f32 v{C+j}, v{160+2*j}, v{161+2*j}\nv_cvt_pk_bf16_f32 v{S+j}, v{164+2*j}, v{165+2*j}")
        for j in range(2): a(f"v_xor_b32 v{N+j}, s29, v{S+j}")
    a(f"s_mov_b32 s29, 0x80008000\nv_mul_f32 v156, {hex(f32(1/64))}, v154\nv_mul_f32 v157, 8.0, v153" .replace("8.0",hex(f32(8.0))))
    for ks in range(2):
        if ks==0: a("v_mul_f32 v158, v156, v157")
        else: a(f"v_add_f32 v158, {hex(f32(32.0))}, v157\nv_mul_f32 v158, v156, v158")
        cs4(156,158,48+4*ks,56+4*ks,64+4*ks); cs4(156,158,50+4*ks,58+4*ks,66+4*ks)
    a(f"v_mul_f32 v157, 4.0, v153\nv_mul_f32 v156, {hex(f32(1/2048))}, v154")
    for blk in range(2):
        if blk==0: a("v_mul_f32 v158, v156, v157")
        else: a(f"v_add_f32 v158, {hex(f32(16.0))}, v157\nv_mul_f32 v158, v156, v158")
        for i in range(4): a(f"v_cos_f32 v{96+4*blk+i}, v158\nv_sin_f32 v{104+4*blk+i}, v158\nv_add_f32 v158, v158, v156")
    for blk in range(2):
        if blk==0: a(f"v_mul_f32 v156, {hex(f32(1/32))}, v152")
        else: a(f"v_add_f32 v156, 0.5, v156")
        for jj in range(2):
            if jj==0: a("v_mul_f32 v158, v156, v157")
            else: a(f"v_add_f32 v158, {hex(f32(16.0))}, v157\nv_mul_f32 v158, v156, v158")
            cs4(156,158,72+4*blk+2*jj,80+4*blk+2*jj,88+4*blk+2*jj)
    a("v_add_f32 v157, v157, v155")
    for blk in range(2):
        if blk==0: a(f"v_mul_f32 v156, {hex(f32(1/2048))}, v152")
        else: a(f"v_add_f32 v156, {hex(f32(16/2048))}, v156")
        a("v_mul_f32 v158, v156, v157")
        for i in range(4): a(f"v_cos_f32 v{112+4*blk+i}, v158\nv_sin_f32 v{120+4*blk+i}, v158\nv_add_f32 v158, v158, v156")
    for r in range(112,128): a(f"v_mul_f32 v{r}, s26, v{r}")
    a("""v_mul_u32_u24 v7, 144, v2
    s_lshl_b32 s28, s22, 5
    v_lshl_add_u32 v6, v3, 3, v7
    v_add_u32 v6, s28, v6
    v_lshl_add_u32 v7, v3, 4, v7
    v_lshl_add_u32 v4, v3, 3, v4
    v_add_u32 v4, s28, v4""")
    DR,DI=128,136
    a("s_waitcnt vmcnt(2)")
    for ks in range(2):
        for blk in range(2):
            XR=8+blk*8+ks*4; XI=24+blk*8+ks*4
            mf16(a,DR+4*blk,XR,48+4*ks,'0' if ks==0 else None); mf16(a,DI+4*blk,XI,48+4*ks,'0' if ks==0 else None)
        for blk in range(2):
            XR=8+blk*8+ks*4; XI=24+blk*8+ks*4
            mf16(a,DR+4*blk,XI,56+4*ks); mf16(a,DI+4*blk,XR,64+4*ks)
    def cmul(C,S,sgn):
        a("s_nop 6")
        n1,n2=('-','') if sgn>0 else ('','-')
        for j in range(0,8,2):
            a(f"v_pk_mul_f32 v[{152+j}:{153+j}], v[{DR+j}:{DR+j+1}], v[{C+j}:{C+j+1}]")
            a(f"v_pk_mul_f32 v[{160+j}:{161+j}], v[{DI+j}:{DI+j+1}], v[{C+j}:{C+j+1}]")
        for j in range(0,8,2):
            m1=" neg_lo:[1,0,0] neg_hi:[1,0,0]" if sgn>0 else ""
            m2=" neg_lo:[1,0,0] neg_hi:[1,0,0]" if sgn<0 else ""
            a(f"v_pk_fma_f32 v[{152+j}:{153+j}], v[{DI+j}:{DI+j+1}], v[{S+j}:{S+j+1}], v[{152+j}:{153+j}]{m1}")
            a(f"v_pk_fma_f32 v[{160+j}:{161+j}], v[{DR+j}:{DR+j+1}], v[{S+j}:{S+j+1}], v[{160+j}:{161+j}]{m2}")
        for j in range(4):
            a(f"v_cvt_pk_bf16_f32 v{144+j}, v{152+2*j}, v{153+2*j}\nv_cvt_pk_bf16_f32 v{148+j}, v{160+2*j}, v{161+2*j}")
        a("s_nop 1")
    cmul(96,104,-1)
    for blk in range(2): mf16(a,DR+4*blk,72+4*blk,144,'0'); mf16(a,DI+4*blk,72+4*blk,148,'0')
    for blk in range(2): mf16(a,DR+4*blk,80+4*blk,148); mf16(a,DI+4*blk,88+4*blk,144)
    a("s_waitcnt vmcnt(0)")
    for j in range(8): a(f"v_lshlrev_b32 v{8+j}, 16, v{40+j}\nv_and_b32 v{16+j}, 0xffff0000, v{40+j}")
    cmul(8,16,+1)
    for blk in range(2): mf16(a,DR+4*blk,144,72+4*blk,'0'); mf16(a,DI+4*blk,148,72+4*blk,'0')
    for blk in range(2): mf16(a,DR+4*blk,148,88+4*blk); mf16(a,DI+4*blk,144,80+4*blk)
    cmul(112,120,+1)
    for blk in range(2):
        a(f"ds_write_b64 v6, v[{144+2*blk}:{145+2*blk}] offset:{blk*2304}\nds_write_b64 v6, v[{148+2*blk}:{149+2*blk}] offset:{4608+blk*2304}")
    a("s_waitcnt lgkmcnt(0)\ns_barrier")
    for ks in range(2):
        for blk in range(2):
            a(f"ds_read_b128 v[{8+blk*8+ks*4}:{11+blk*8+ks*4}], v7 offset:{blk*2304+ks*64}")
            a(f"ds_read_b128 v[{24+blk*8+ks*4}:{27+blk*8+ks*4}], v7 offset:{4608+blk*2304+ks*64}")
    for ks in range(2):
        a(f"s_waitcnt lgkmcnt({4-4*ks})")
        for blk in range(2):
            XR=8+blk*8+ks*4; XI=24+blk*8+ks*4
            mf16(a,DR+4*blk,48+4*ks,XR,'0' if ks==0 else None); mf16(a,DI+4*blk,48+4*ks,XI,'0' if ks==0 else None)
        for blk in range(2):
            XR=8+blk*8+ks*4; XI=24+blk*8+ks*4
            mf16(a,DR+4*blk,64+4*ks,XI); mf16(a,DI+4*blk,56+4*ks,XR)
    a("s_nop 6")
    for j in range(4):
        a(f"v_cvt_pk_bf16_f32 v{144+j}, v{DR+2*j}, v{DR+2*j+1}\nv_cvt_pk_bf16_f32 v{148+j}, v{DI+2*j}, v{DI+2*j+1}")
    for blk in range(2):
        a(f"buffer_store_dwordx2 v[{144+2*blk}:{145+2*blk}], v4, s[16:19], s24 offen offset:{blk*2048} STF")
        a(f"buffer_store_dwordx2 v[{148+2*blk}:{149+2*blk}], v4, s[16:19], s25 offen offset:{blk*2048} STF")
    a("s_endpgm")
def gemm2(a):
    srd(a,8,6,H_OFF,H_SZ); srd(a,12,4,0,1792*896); srd(a,16,6,P_OFF,P_SZ)
    a("""s_and_b32 s20, s2, 3
    s_lshr_b32 s28, s2, 3
    s_and_b32 s21, s28, 3
    s_lshr_b32 s28, s28, 2
    s_and_b32 s29, s2, 4
    s_lshl_b32 s29, s29, 1
    s_add_u32 s28, s28, s29
    s_lshl_b32 s28, s28, 2
    s_add_u32 s23, s28, s22
    s_mul_i32 s24, s23, 112
    s_mul_i32 s28, s20, 28
    s_add_u32 s24, s24, s28
    s_lshl_b32 s24, s24, 10
    s_mul_i32 s30, s21, 7
    s_add_u32 s30, s30, 1
    s_lshr_b32 s30, s30, 1
    s_mul_i32 s25, s20, 448
    s_lshl_b32 s28, s22, 4
    s_add_u32 s25, s25, s28
    s_mul_i32 s25, s25, 896
    s_lshl_b32 s28, s30, 6
    s_add_u32 s25, s25, s28
    s_add_u32 s27, s25, 192
    s_bitcmp1_b32 s21, 0
    s_cselect_b32 s27, 0x40000000, s27
    s_lshl_b32 s26, s22, 12
    v_lshlrev_b32 v2, 4, v1
    v_lshrrev_b32 v4, 2, v1
    v_mul_u32_u24 v4, 896, v4
    v_and_b32 v5, 3, v1
    v_lshl_add_u32 v4, v5, 4, v4""")
    def lda(ch):
        for e in range(4): a(f"buffer_load_dwordx4 v[{64+16*ch+4*e}:{67+16*ch+4*e}], v2, s[8:11], s24 offen offset:{e*1024}")
        a("s_add_u32 s24, s24, 4096")
    def ldb(ch):
        g=[]
        for b in range(4):
            src = f"s_add_u32 s28, s25, {ch*64*896+b*64}" if b<3 else f"s_add_u32 s28, s27, {ch*64*896}"
            g.append(f"s_add_u32 m0, s26, {(ch&3)*16384+b*1024}\n{src}\nbuffer_load_dwordx4 v4, s[12:15], s28 offen lds")
        return g
    for ch in range(4):
        lda(ch)
        for x in ldb(ch): a(x)
    for ch in range(4,7): lda(ch)
    a("""v_lshrrev_b32 v16, 5, v1
    v_lshlrev_b32 v16, 3, v16
    v_bfe_u32 v17, v1, 2, 2
    v_add_u32 v16, v16, v17
    v_lshlrev_b32 v16, 6, v16
    v_bfe_u32 v17, v1, 4, 1
    v_and_b32 v18, 3, v1
    v_lshl_add_u32 v17, v17, 2, v18
    v_lshlrev_b32 v17, 2, v17""")
    swap23(a,17,17,18)
    a("v_lshl_add_u32 v16, v17, 1, v16")
    def reads(s):
        B=24+16*(s&1); base=((s>>2)&3)*16384+(s&3)*4096; g=[]
        for b in range(4):
            g.append(f"ds_read_b64_tr_b16 v[{B+4*b}:{B+4*b+1}], v16 offset:{base+b*1024}")
            g.append(f"ds_read_b64_tr_b16 v[{B+4*b+2}:{B+4*b+3}], v16 offset:{base+b*1024+256}")
        return g
    W=[36,28,24,20,8,4,0]
    a(f"s_waitcnt vmcnt({W[0]})\ns_barrier")
    for x in reads(0): a(x)
    for s in range(28):
        ch=s>>2; B=24+16*(s&1); A=64+4*s; fill=[]
        if (s&3)<3: a("s_waitcnt lgkmcnt(0)"); fill=reads(s+1)
        elif ch<6:
            a(f"s_waitcnt vmcnt({W[ch+1]}) lgkmcnt(0)\ns_barrier"); fill=reads(s+1)
            if ch+4<7: fill+=ldb(ch+4)
        else: a("s_waitcnt lgkmcnt(0)")
        n=len(fill); k=0
        for b in range(4):
            D=176+16*b
            a(f"v_mfma_f32_32x32x16_bf16 v[{D}:{D+15}], v[{B+4*b}:{B+4*b+3}], v[{A}:{A+3}], "+("0" if s==0 else f"v[{D}:{D+15}]"))
            e=min(n,(n*(b+1)+2)//3)
            while k<e: a(fill[k]); k+=1
    a("""s_lshl_b32 s28, s20, 6
    s_add_u32 s28, s28, s23
    s_mul_i32 s28, s28, 28
    s_lshl_b32 s30, s30, 1
    s_add_u32 s28, s28, s30
    s_lshl_b32 s28, s28, 10
    s_nop 7""")
    for b in range(4):
        D=176+16*b
        if b==3: a("s_bitcmp1_b32 s21, 0\ns_cbranch_scc1 Lend2")
        for j in range(8): a(f"v_cvt_pk_bf16_f32 v{D+j}, v{D+2*j}, v{D+2*j+1}")
        a(f"buffer_store_dwordx4 v[{D}:{D+3}], v2, s[16:19], s28 offen offset:{(b&1)*2048} STF")
        a(f"buffer_store_dwordx4 v[{D+4}:{D+7}], v2, s[16:19], s28 offen offset:{(b&1)*2048+1024} STF")
        if b==1: a("s_add_u32 s28, s28, 4096")
    a("s_endpgm")
def k2():
    a=Asm()
    a("""s_cmp_ge_u32 s2, 481
    s_cbranch_scc1 Lend2
    s_load_dwordx2 s[4:5], s[0:1], 40
    s_load_dwordx2 s[6:7], s[0:1], 64
    v_lshrrev_b32 v2, 6, v0
    v_and_b32 v1, 63, v0
    v_readfirstlane_b32 s22, v2
    s_cmp_ge_u32 s2, 256
    s_waitcnt lgkmcnt(0)
    s_cbranch_scc1 Lfft""")
    gemm2(a)
    a("Lfft:"); fft(a)
    a("Lend2:\ns_endpgm")
    return a.text()
```

```python
from common import *
from k1 import swap23
K3_LDS=114688; FB=57344
def k3():
    a=Asm()
    a("""s_cmp_ge_u32 s2, 224
    s_cbranch_scc1 Lend3
    s_load_dwordx2 s[4:5], s[0:1], 0
    s_load_dwordx2 s[6:7], s[0:1], 64
    s_load_dwordx2 s[20:21], s[0:1], 48
    v_lshrrev_b32 v2, 6, v0
    v_and_b32 v1, 63, v0
    v_readfirstlane_b32 s3, v2
    s_lshr_b32 s28, s2, 3
    s_and_b32 s30, s2, 7
    s_lshl_b32 s30, s30, 2
    s_and_b32 s29, s28, 3
    s_add_u32 s30, s30, s29
    s_lshr_b32 s31, s28, 2
    s_and_b32 s32, s3, 1
    s_lshr_b32 s33, s3, 1""")
    tab_srd(a,12,'k3')
    a("""s_lshl_b32 s34, s30, 1
    s_add_u32 s34, s34, s32
    s_mul_i32 s34, s34, 28
    s_lshl_b32 s28, s31, 1
    s_add_u32 s28, s28, s33
    s_lshl_b32 s29, s28, 1
    s_add_u32 s34, s34, s29
    s_lshl_b32 s34, s34, 10
    s_lshl_b32 s35, s28, 6
    s_lshl_b32 s28, s32, 10
    s_add_u32 s28, s28, s30
    s_mul_i32 s28, s28, 896
    s_add_u32 s35, s35, s28
    v_lshlrev_b32 v2, 4, v1
    v_and_b32 v5, 31, v1
    v_lshrrev_b32 v6, 5, v1
    v_mul_u32_u24 v3, 28672, v5
    v_lshl_add_u32 v3, v6, 4, v3
    v_lshrrev_b32 v8, 3, v1
    v_and_b32 v9, 7, v1
    v_lshrrev_b32 v10, 4, v1
    v_xor_b32 v11, v9, v10
    v_mul_u32_u24 v12, 896, v8
    v_lshl_add_u32 v12, v11, 4, v12
    v_xor_b32 v13, 64, v12
    v_and_b32 v10, 1, v10
    v_lshlrev_b32 v10, 2, v10
    v_xor_b32 v9, v9, v10
    v_lshlrev_b32 v14, 12, v8
    v_lshl_add_u32 v14, v9, 4, v14
    s_lshl_b32 s36, s3, 16
    s_lshl_b32 s28, s30, 7
    s_add_u32 s36, s36, s28
    s_lshl_b32 s37, s31, 2
    s_add_u32 s37, s37, s3
    s_mul_i32 s37, s37, 14336
    s_lshl_b32 s38, s3, 11
    s_waitcnt lgkmcnt(0)""")
    srd(a,8,6,P_OFF,P_SZ); srd(a,16,6,YT_OFF,YT_SZ); srd(a,24,4,0,0x1C0000)
    a("s_mov_b32 s22, 0x1C0000\ns_mov_b32 s23, 0x20000")
    for ks in range(4):
        for u in range(2): a(f"buffer_load_dwordx4 v[{32+8*ks+4*u}:{35+8*ks+4*u}], v2, s[8:11], s34 offen offset:{u*1024}")
        if ks<3: a(f"s_add_u32 s34, s34, {64*28*1024}")
    for u in range(2): a(f"buffer_load_dwordx4 v[{64+4*u}:{67+4*u}], v3, s[24:27], s35 offen offset:{u*32}")
    a("s_mov_b32 s39, 0\nLdma3:")
    a(f"""s_add_u32 m0, s38, 0
    s_add_u32 s28, s36, 32768
    buffer_load_dwordx4 v14, s[16:19], s36 offen lds
    s_add_u32 m0, s38, 1024
    s_add_u32 s36, s36, 262144
    buffer_load_dwordx4 v14, s[16:19], s28 offen lds
    s_add_u32 m0, s38, {FB}
    s_add_u32 s28, s37, 7168
    buffer_load_dwordx4 v12, s[12:15], s37 offen lds
    s_add_u32 m0, s38, {FB+1024}
    s_add_u32 s37, s37, 128
    buffer_load_dwordx4 v13, s[12:15], s28 offen lds
    s_add_u32 s38, s38, 8192
    s_add_u32 s39, s39, 1
    s_cmp_lt_u32 s39, 7
    s_cbranch_scc1 Ldma3""")
    swap23(a,5,5,7)
    a(f"""s_lshl_b32 s28, s33, 12
    s_add_u32 s28, s28, {FB}
    v_bfe_u32 v7, v5, 1, 3
    v_lshlrev_b32 v5, 7, v5
    v_add_u32 v5, s28, v5""")
    for e in range(4): a(f"v_add_u32 v8, {2*e}, v6\nv_xor_b32 v8, v8, v7\nv_lshl_add_u32 v{16+e}, v8, 4, v5")
    a("""v_bfe_u32 v8, v1, 2, 2
    v_lshl_add_u32 v9, v6, 3, v8
    v_lshlrev_b32 v9, 7, v9
    v_lshrrev_b32 v8, 1, v8
    v_xor_b32 v8, s32, v8
    v_lshl_add_u32 v9, v8, 6, v9
    v_bfe_u32 v8, v1, 4, 1
    v_lshl_add_u32 v9, v8, 5, v9
    v_and_b32 v8, 3, v1
    v_lshl_add_u32 v20, v8, 3, v9""")
    a(f"s_mov_b32 s28, 0xffff0000\ns_mov_b32 s29, {hex(f32(-1.4426950408889634))}\ns_waitcnt vmcnt(30)")
    for j in range(8):
        for ks in range(4): a(f"v_lshlrev_b32 v{96+2*ks}, 16, v{32+8*ks+j}\nv_and_b32 v{97+2*ks}, s28, v{32+8*ks+j}")
        G=80+2*j
        a(f"""v_pk_add_f32 v[96:97], v[96:97], v[98:99]
        v_pk_add_f32 v[100:101], v[100:101], v[102:103]
        v_pk_add_f32 v[96:97], v[96:97], v[100:101]
        v_cvt_pk_bf16_f32 v98, v96, v97
        v_lshlrev_b32 v96, 16, v98
        v_and_b32 v97, s28, v98
        v_mul_f32 v98, s29, v96
        v_mul_f32 v99, s29, v97
        v_exp_f32 v98, v98
        v_exp_f32 v99, v99
        s_nop 0
        v_pk_add_f32 v[98:99], v[98:99], 1.0 op_sel_hi:[1,0]
        v_rcp_f32 v98, v98
        v_rcp_f32 v99, v99
        s_nop 0
        v_pk_mul_f32 v[96:97], v[96:97], v[98:99]
        v_cvt_pk_bf16_f32 v98, v96, v97
        v_lshlrev_b32 v{G}, 16, v98
        v_and_b32 v{G+1}, s28, v98""")
    def reads(s):
        b=s%3; F=32+8*b; Y=36+8*b
        return [f"ds_read_b128 v[{F}:{F+3}], v{16+(s&3)} offset:{(s>>2)*8192}",
                f"ds_read_b64_tr_b16 v[{Y}:{Y+1}], v20 offset:{s*2048}",
                f"ds_read_b64_tr_b16 v[{Y+2}:{Y+3}], v20 offset:{s*2048+512}"]
    def need(s):
        if s<28:
            if s%4==0: a(f"s_waitcnt vmcnt({(6-s//4)*4})\ns_barrier")
            for x in reads(s): a(x)
    need(0); need(1)
    for s in range(28):
        b=s%3; F=32+8*b; Y=36+8*b
        need(s+2)
        a(f"s_waitcnt lgkmcnt({3*min(2,27-s)})")
        a(f"v_mfma_f32_32x32x16_bf16 v[112:127], v[{F}:{F+3}], v[{Y}:{Y+3}], "+("0" if s==0 else "v[112:127]"))
    for j in range(8): a(f"v_lshlrev_b32 v{96+2*j}, 16, v{64+j}\nv_and_b32 v{97+2*j}, s28, v{64+j}")
    for j in range(8): a(f"v_cvt_pk_bf16_f32 v{32+j}, v{112+2*j}, v{113+2*j}")
    for j in range(8): a(f"v_lshlrev_b32 v{112+2*j}, 16, v{32+j}\nv_and_b32 v{113+2*j}, s28, v{32+j}")
    for j in range(8): a(f"v_pk_mul_f32 v[{112+2*j}:{113+2*j}], v[{112+2*j}:{113+2*j}], v[{80+2*j}:{81+2*j}]")
    for j in range(8): a(f"v_cvt_pk_bf16_f32 v{32+j}, v{112+2*j}, v{113+2*j}")
    for j in range(8): a(f"v_lshlrev_b32 v{112+2*j}, 16, v{32+j}\nv_and_b32 v{113+2*j}, s28, v{32+j}")
    for j in range(8): a(f"v_pk_add_f32 v[{112+2*j}:{113+2*j}], v[{112+2*j}:{113+2*j}], v[{96+2*j}:{97+2*j}]")
    for j in range(8): a(f"v_cvt_pk_bf16_f32 v{32+j}, v{112+2*j}, v{113+2*j}")
    for u in range(2): a(f"buffer_store_dwordx4 v[{32+4*u}:{35+4*u}], v3, s[20:23], s35 offen offset:{u*32}")
    a("Lend3:\ns_endpgm")
    return a.text()
```

```python
import sys
from common import *
import k1,k2,k3
out=sys.argv[1] if len(sys.argv)>1 else 'recurrent_scan__spectral_gfnet__dense_activation_relu__prompt.s'
stf=sys.argv[2] if len(sys.argv)>2 else ''
hdr=open('recurrent_scan__spectral_gfnet__dense_activation_relu__prompt.s.ref').read().split('; Override launch')[0]
s=hdr
s+=f"; @launch kernel=k1_kernel grid=(256,1,1) block=(256,1,1) lds={k1.K1_LDS}\n"
s+=f"; @launch kernel=k2_kernel grid=(481,1,1) block=(256,1,1) lds={k2.K2_LDS}\n"
s+=f"; @launch kernel=k3_kernel grid=(224,1,1) block=(256,1,1) lds={k3.K3_LDS}\n"
s+='.amdgcn_target "amdgcn-amd-amdhsa--gfx950"\n.text\n'
s+=head('k1_kernel')+k1.k1()+head('k2_kernel')+k2.k2()+head('k3_kernel')+k3.k3()
s=s.replace(' STF',(' '+stf) if stf else '')
s+=ftable()
s+='.section .rodata,"a"\n'+desc('k1_kernel',168)+desc('k2_kernel',240)+desc('k3_kernel',128)
open(out,'w').write(s)
```

```python
import math, struct
def bf16(x):
    u = struct.unpack('<I', struct.pack('<f', x))[0]
    return ((u + 0x7fff + ((u >> 16) & 1)) >> 16) & 0xffff
def f32(x): return struct.unpack('<I', struct.pack('<f', x))[0]
H_OFF=0x0; H_SZ=0x700000
X1_OFF=0x1400000; X1_SZ=448*4352
WT_OFF=0x8C0000; WT_SZ=225*8192
YT_OFF=0xB00000; YT_SZ=448*4352
P_OFF=0xD00000; P_SZ=4*0x1C0000
class Asm:
    def __init__(s): s.l=[]
    def __call__(s, t):
        for x in t.strip('\n').split('\n'): s.l.append('  '+x.strip() if not x.strip().endswith(':') else x.strip())
    def text(s): return '\n'.join(s.l)+'\n'
def srd(a, d, base, off, size):
    if off:
        a(f"s_add_u32 s{d}, s{base}, {hex(off)}\ns_addc_u32 s{d+1}, s{base+1}, 0")
    else:
        a(f"s_mov_b32 s{d}, s{base}\ns_mov_b32 s{d+1}, s{base+1}")
    a(f"s_mov_b32 s{d+2}, {hex(size)}\ns_mov_b32 s{d+3}, 0x20000")
def tab_srd(a, d, tag):
    a(f"s_getpc_b64 s[{d}:{d+1}]\nLpc_{tag}:\ns_add_u32 s{d}, s{d}, ftab-Lpc_{tag}\ns_addc_u32 s{d+1}, s{d+1}, 0\ns_mov_b32 s{d+2}, {448*896}\ns_mov_b32 s{d+3}, 0x20000")
def ftable():
    o=[]
    for i in range(448): o.append(f".set T{i}, {hex(bf16(math.cos(2*math.pi*i/448)))}")
    o.append("""
.altmacro
.macro E2 a, b
.long T\\a | (T\\b << 16)
.endm
.p2align 8
.type ftab,@object
ftab:
.set tn, 0
.rept 448
E2 0, %((tn*224) % 448)
.set tf, 1
.rept 223
E2 %((tn*tf) % 448), %((tn*tf+112) % 448)
.set tf, tf+1
.endr
.set tn, tn+1
.endr
.size ftab, 401408
.noaltmacro
""")
    return '\n'.join(o)
def desc(name, vg, acc=None, sg=96):
    acc = acc or (vg+3)//4*4
    return f""".p2align 6
.amdhsa_kernel {name}
  .amdhsa_next_free_vgpr {vg}
  .amdhsa_next_free_sgpr {sg}
  .amdhsa_accum_offset {acc}
  .amdhsa_group_segment_fixed_size 0
  .amdhsa_kernarg_size 72
  .amdhsa_user_sgpr_count 2
  .amdhsa_user_sgpr_kernarg_segment_ptr 1
  .amdhsa_system_sgpr_workgroup_id_x 1
.end_amdhsa_kernel
"""
def head(name): return f".globl {name}\n.p2align 8\n.type {name},@function\n{name}:\n"
import os
DIAG=int(os.environ.get('DIAG','0'))
def stamp(a,i):
    if DIAG: a(f"s_memrealtime s[{60+2*i}:{61+2*i}]\ns_waitcnt lgkmcnt(0)")
def flush(a,kern,ws,wave):
    if not DIAG: return
    stamp(a,6)
    a("s_waitcnt vmcnt(0)"); stamp(a,7)
    a(f"s_add_u32 s80, s{ws}, 0x1800000\ns_addc_u32 s81, s{ws+1}, 0\ns_mov_b32 s82, 0x100000\ns_mov_b32 s83, 0x20000")
    a(f"s_lshl_b32 s84, s2, 4\ns_add_u32 s84, s84, s{wave}\ns_lshl_b32 s84, s84, 5\ns_add_u32 s84, s84, {kern*262144}\nv_mov_b32 v0, 0")
    for i in range(8): a(f"v_mov_b32 v{8+i}, s{60+2*i}")
    a("buffer_store_dwordx4 v[8:11], v0, s[80:83], s84 offen\nbuffer_store_dwordx4 v[12:15], v0, s[80:83], s84 offen offset:16\ns_waitcnt vmcnt(0)")
```

```python
from common import *
ST=36864; CSP=147456; CSF=152576; RST=153216; K1_LDS=154752
def swap23(a, d, s, t):
    a(f"v_lshrrev_b32 v{t}, 1, v{s}\nv_xor_b32 v{t}, v{t}, v{s}\nv_and_b32 v{t}, 4, v{t}\nv_mul_u32_u24 v{t}, 3, v{t}\nv_xor_b32 v{d}, v{s}, v{t}")
def tr_addr(a, d, perm):
    a(f"""v_lshrrev_b32 v{d}, 5, v1
    v_bfe_u32 v17, v1, 2, 2
    v_lshl_add_u32 v{d}, v{d}, 3, v17
    v_lshlrev_b32 v{d}, 6, v{d}
    v_bfe_u32 v17, v1, 4, 1
    v_and_b32 v18, 3, v1
    v_lshl_add_u32 v17, v17, 2, v18
    v_lshlrev_b32 v17, 2, v17""")
    if perm: swap23(a,17,17,18)
    a(f"v_lshl_add_u32 v{d}, v17, 1, v{d}")
def a_addr(a, d, perm, sbase):
    a("v_and_b32 v5, 31, v1")
    if perm: swap23(a,5,5,6)
    a(f"v_lshrrev_b32 v6, 5, v1\nv_bfe_u32 v7, v5, 1, 3\nv_lshlrev_b32 v5, 7, v5\nv_add_u32 v5, s{sbase}, v5")
    for e in range(4): a(f"v_add_u32 v17, {2*e}, v6\nv_xor_b32 v17, v17, v7\nv_lshl_add_u32 v{d+e}, v17, 4, v5")
def loader(a):
    a(f"""v_lshrrev_b32 v2, 3, v1
    v_mul_u32_u24 v2, 28672, v2
    v_and_b32 v3, 7, v1
    v_lshrrev_b32 v4, 4, v1
    v_xor_b32 v3, v3, v4
    v_lshl_add_u32 v2, v3, 4, v2
    v_xor_b32 v3, 64, v2
    s_and_b32 s28, s22, 1
    s_lshl_b32 s28, s28, 10
    s_lshr_b32 s29, s22, 1
    s_add_u32 s28, s28, s29
    s_lshl_b32 s29, s20, 1
    s_add_u32 s28, s28, s29
    s_mul_i32 s24, s28, 896
    v_lshrrev_b32 v4, 2, v1
    v_mul_lo_u32 v4, s23, v4
    v_and_b32 v5, 3, v1
    v_lshl_add_u32 v4, v5, 4, v4
    s_mul_i32 s25, s22, s23
    s_lshl_b32 s25, s25, 4
    s_mul_i32 s28, s21, 320
    s_add_u32 s25, s25, s28
    s_lshl_b32 s26, s22, 12
    s_mul_i32 s29, s22, 5120
    s_add_u32 s29, s29, 16384
    s_lshl_b32 s23, s23, 6
    s_mov_b32 s27, 0""")
    a("""s_and_b32 s28, s20, 3
    s_lshl_b32 s28, s28, 1
    s_add_u32 s30, s28, s40
    s_mul_i32 s28, s30, 37
    s_lshr_b32 s28, s28, 8
    s_mul_i32 s28, s28, 7
    s_sub_u32 s30, s30, s28
    s_lshl_b32 s28, s30, 7
    s_add_u32 s24, s24, s28
    s_mul_i32 s28, s30, s23
    s_add_u32 s25, s25, s28
    s_mul_i32 s31, s23, 7""")
    def dma():
        for i in range(4): a(f"s_add_u32 m0, s26, {i*1024}\ns_add_u32 s28, s24, {i*8*28672}\nbuffer_load_dwordx4 v{2+(i&1)}, s[8:11], s28 offen lds")
        for b in range(5): a(f"s_add_u32 m0, s29, {b*1024}\ns_add_u32 s28, s25, {b*64}\nbuffer_load_dwordx4 v4, s[12:15], s28 offen lds")
        a(f"""s_add_u32 s27, s27, 1
        s_add_u32 s24, s24, 128
        s_add_u32 s25, s25, s23
        s_add_u32 s30, s30, 1
        s_cmp_eq_u32 s30, 7
        s_cselect_b32 s28, 896, 0
        s_cselect_b32 s32, s31, 0
        s_sub_u32 s24, s24, s28
        s_sub_u32 s25, s25, s32
        s_and_b32 s28, s27, 3
        s_cselect_b32 s28, s38, s39
        s_add_u32 s26, s26, s28
        s_add_u32 s29, s29, s28""")
    dma()
    if DIAG:
        for i in range(6):
            dma(); a("s_waitcnt vmcnt(9)")
            if i in (0,1,2,3,5): stamp(a,{0:1,1:2,2:3,3:4,5:5}[i])
            a("s_barrier")
        a("s_waitcnt vmcnt(0)\ns_barrier\ns_branch Lfin1")
    a("Lpro:"); dma()
    a("s_waitcnt vmcnt(9)\ns_barrier\ns_cmp_lt_u32 s27, 7\ns_cbranch_scc1 Lpro\ns_waitcnt vmcnt(0)\ns_barrier\ns_branch Lfin1")
def stats(a):
    a("s_lshl_b32 s28, s22, 12"); a_addr(a,8,False,28); tr_addr(a,12,False)
    a("s_mul_i32 s31, s22, 5120\ns_add_u32 s31, s31, 16384\nv_add_u32 v12, s31, v12\nv_mov_b32 v79, 0x3f803f80")
    for r in range(72,79): a(f"v_mov_b32 v{r}, 0")
    a("s_mov_b32 s30, 0\nLld:\ns_barrier")
    for e in range(4): a(f"ds_read_b128 v[{24+4*e}:{27+4*e}], v{8+e}")
    for b in range(5): a(f"ds_read_b64_tr_b16 v[{40+4*b}:{41+4*b}], v12 offset:{b*1024}\nds_read_b64_tr_b16 v[{42+4*b}:{43+4*b}], v12 offset:{b*1024+256}")
    a("s_add_u32 s30, s30, 1\ns_and_b32 s28, s30, 3\ns_cselect_b32 s28, s38, s39")
    for r in range(8,13): a(f"v_add_u32 v{r}, s28, v{r}")
    a("s_waitcnt lgkmcnt(10)")
    for j in range(16): a(f"v_dot2c_f32_bf16 v72, v{24+j}, v79\nv_dot2c_f32_bf16 v73, v{24+j}, v{24+j}")
    a("s_waitcnt lgkmcnt(0)")
    for j in range(4):
        for b in range(5): a(f"v_dot2c_f32_bf16 v{74+b}, v{40+4*b+j}, v79")
    a("s_cmp_lt_u32 s30, 7\ns_cbranch_scc1 Lld")
    a(f"""v_lshrrev_b32 v6, 5, v1
    s_lshl_b32 s28, s22, 1
    v_add_u32 v6, s28, v6
    v_mul_u32_u24 v6, 640, v6
    v_and_b32 v5, 31, v1
    v_lshl_add_u32 v6, v5, 2, v6
    v_add_u32 v6, {CSP}, v6""")
    for b in range(5): a(f"ds_write_b32 v6, v{74+b} offset:{b*128}")
    a(f"""v_mov_b32 v20, v72
    v_mov_b32 v21, v73
    s_nop 1
    v_permlane32_swap_b32 v72, v20
    v_permlane32_swap_b32 v73, v21
    s_nop 1
    v_add_f32 v72, v72, v20
    v_add_f32 v73, v73, v21
    v_mul_f32 v72, {hex(f32(1/448))}, v72
    v_mul_f32 v73, {hex(f32(1/448))}, v73
    v_fma_f32 v73, -v72, v72, v73
    v_max_f32 v73, 0, v73
    v_cvt_pk_bf16_f32 v72, v72, v73
    v_and_b32 v73, 0xffff0000, v72
    v_lshlrev_b32 v72, 16, v72
    v_add_f32 v73, {hex(f32(1e-5))}, v73
    v_cvt_pk_bf16_f32 v73, v73, v73
    v_and_b32 v73, 0xffff0000, v73
    v_sqrt_f32 v73, v73
    s_waitcnt lgkmcnt(0)
    s_barrier
    v_cvt_pk_bf16_f32 v73, v73, v73
    v_and_b32 v73, 0xffff0000, v73
    v_rcp_f32 v76, v73
    v_and_b32 v6, 255, v0
    v_lshlrev_b32 v6, 2, v6
    v_add_u32 v7, {CSP}, v6""")
    for i in range(8): a(f"ds_read_b32 v{24+i}, v7 offset:{i*640}")
    a(f"""v_mul_f32 v77, v76, v72
    s_mul_i32 s28, s22, 384
    s_add_u32 s28, s28, {RST}
    v_lshl_add_u32 v5, v5, 2, s28
    ds_write_b32 v5, v76
    ds_write_b32 v5, v77 offset:128
    ds_write_b32 v5, v72 offset:256
    s_waitcnt lgkmcnt(3)
    v_add_f32 v24, v24, v25
    v_add_f32 v26, v26, v27
    v_add_f32 v28, v28, v29
    v_add_f32 v30, v30, v31
    v_add_f32 v24, v24, v26
    v_add_f32 v28, v28, v30
    v_add_f32 v24, v24, v28
    v_cmp_gt_u32 vcc, 640, v6
    s_and_saveexec_b64 s[36:37], vcc
    v_add_u32 v7, {CSF}, v6
    ds_write_b32 v7, v24
    s_mov_b64 exec, s[36:37]
    s_waitcnt lgkmcnt(0)
    s_barrier
    s_branch Lfin1""")
def gemm(a, isF):
    T='F' if isF else 'W'
    srd(a,16,6,X1_OFF if isF else H_OFF,X1_SZ if isF else H_SZ)
    a("s_lshl_b32 s28, s22, 12"); a_addr(a,8,isF,28); tr_addr(a,12,not isF)
    a("v_add_u32 v12, 16384, v12")
    for r in range(80,160): a(f"v_mov_b32 v{r}, 0")
    def reads(t):
        bf=t&1; A=24+4*bf; B=32+20*bf
        g=[f"ds_read_b128 v[{A}:{A+3}], v{8+t}"]
        for b in range(5):
            g.append(f"ds_read_b64_tr_b16 v[{B+4*b}:{B+4*b+1}], v12 offset:{t*5120+b*1024}")
            g.append(f"ds_read_b64_tr_b16 v[{B+4*b+2}:{B+4*b+3}], v12 offset:{t*5120+b*1024+256}")
        return g
    stamp(a,1)
    a("s_mov_b32 s30, 0\ns_barrier")
    stamp(a,2)
    for x in reads(0): a(x)
    a(f"Lloop{T}:")
    for t in range(4):
        bf=t&1; A=24+4*bf; B=32+20*bf
        if t<3:
            a("s_waitcnt lgkmcnt(0)"); fill=reads(t+1)
        else:
            a("s_add_u32 s30, s30, 1\ns_and_b32 s28, s30, 3\ns_cselect_b32 s28, s38, s39\nv_add_u32 v8, s28, v8\nv_add_u32 v12, s28, v12")
            a("s_waitcnt lgkmcnt(0)\ns_barrier")
            fill=reads(0)+[f"v_add_u32 v{r}, s28, v{r}" for r in (9,10,11)]
        n=len(fill); k=0
        for b in range(5):
            D=80+16*b
            if isF: a(f"v_mfma_f32_32x32x16_bf16 v[{D}:{D+15}], v[{A}:{A+3}], v[{B+4*b}:{B+4*b+3}], v[{D}:{D+15}]")
            else:   a(f"v_mfma_f32_32x32x16_bf16 v[{D}:{D+15}], v[{B+4*b}:{B+4*b+3}], v[{A}:{A+3}], v[{D}:{D+15}]")
            e=min(n,3*(b+1)+(1 if b>=3 else 0)*9)
            while k<e: a(fill[k]); k+=1
    a(f"s_cmp_lt_u32 s30, 7\ns_cbranch_scc1 Lloop{T}")
    stamp(a,3)
    a(f"v_lshrrev_b32 v6, 5, v1\nv_and_b32 v5, 31, v1\ns_mul_i32 s29, s22, 384\ns_add_u32 s29, s29, {RST}")
    if not isF:
        a(f"v_lshlrev_b32 v6, 5, v6\nv_add_u32 v6, {CSF}, v6\nv_lshlrev_b32 v7, 4, v1\nv_lshl_add_u32 v5, v5, 2, s29")
        a("s_lshl_b32 s28, s20, 2\ns_add_u32 s28, s28, s22\ns_mul_i32 s28, s28, 112\ns_mul_i32 s30, s21, 10\ns_add_u32 s28, s28, s30\ns_lshl_b32 s28, s28, 10")
        a("s_waitcnt lgkmcnt(0)\ns_barrier\nds_read_b32 v76, v5\nds_read_b32 v72, v5 offset:256")
        def csr(b):
            C=24+16*(b&1)
            for u in range(2):
                for q in range(2): a(f"ds_read_b128 v[{C+8*u+4*q}:{C+8*u+4*q+3}], v6 offset:{b*128+u*64+q*16}")
        csr(0)
        for b in range(5):
            C=24+16*(b&1); D=80+16*b
            if b<4: csr(b+1); a("s_waitcnt lgkmcnt(4)")
            else: a("s_waitcnt lgkmcnt(0)")
            for j in range(0,16,2): a(f"v_pk_fma_f32 v[{D+j}:{D+j+1}], v[{C+j}:{C+j+1}], v[72:73], v[{D+j}:{D+j+1}] op_sel_hi:[1,0,1] neg_lo:[0,1,0] neg_hi:[0,1,0]")
            for j in range(0,16,2): a(f"v_pk_mul_f32 v[{D+j}:{D+j+1}], v[{D+j}:{D+j+1}], v[76:77] op_sel_hi:[1,0]")
            for j in range(8): a(f"v_cvt_pk_bf16_f32 v{D+j}, v{D+2*j}, v{D+2*j+1}")
            for j in range(8): a(f"v_pk_max_i16 v{D+j}, v{D+j}, 0")
            a(f"buffer_store_dwordx4 v[{D}:{D+3}], v7, s[16:19], s28 offen offset:{(b&1)*2048} STH")
            a(f"buffer_store_dwordx4 v[{D+4}:{D+7}], v7, s[16:19], s28 offen offset:{(b&1)*2048+1024} STH")
            if b&1: a("s_add_u32 s28, s28, 4096")
            if b==0: a("s_cmp_eq_u32 s21, 11\ns_cbranch_scc1 Lfin1")
    else:
        a(f"""v_lshl_add_u32 v4, v6, 5, s29
        v_lshlrev_b32 v3, 2, v5
        v_add_u32 v3, {CSF}, v3
        v_lshlrev_b32 v7, 12, v5
        v_lshl_add_u32 v7, v6, 4, v7
        s_mul_i32 s28, s21, 655360
        s_lshl_b32 s30, s20, 8
        s_add_u32 s28, s28, s30
        s_lshl_b32 s30, s22, 6
        s_add_u32 s28, s28, s30
        s_waitcnt lgkmcnt(0)
        s_barrier""")
        for z in range(2):
            for u in range(2):
                for q in range(2): a(f"ds_read_b128 v[{24+16*z+8*u+4*q}:{24+16*z+8*u+4*q+3}], v4 offset:{z*128+u*64+q*16}")
        for b in range(5): a(f"ds_read_b32 v{60+2*b}, v3 offset:{b*128}")
        a("s_waitcnt lgkmcnt(0)")
        for b in range(5):
            D=80+16*b
            for j in range(0,16,2): a(f"v_pk_mul_f32 v[{D+j}:{D+j+1}], v[{D+j}:{D+j+1}], v[{24+j}:{25+j}]")
            for j in range(0,16,2): a(f"v_pk_fma_f32 v[{D+j}:{D+j+1}], v[{40+j}:{41+j}], v[{60+2*b}:{61+2*b}], v[{D+j}:{D+j+1}] op_sel_hi:[1,0,1] neg_lo:[0,1,0] neg_hi:[0,1,0]")
            for j in range(8): a(f"v_cvt_pk_bf16_f32 v{D+j}, v{D+2*j}, v{D+2*j+1}")
            a(f"buffer_store_dwordx4 v[{D}:{D+3}], v7, s[16:19], s28 offen STF")
            a(f"buffer_store_dwordx4 v[{D+4}:{D+7}], v7, s[16:19], s28 offen offset:32 STF")
            if b<4: a("s_add_u32 s28, s28, 131072")
    a("s_branch Lfin1")
def wtrans(a):
    a("s_load_dwordx4 s[24:27], s[0:1], 8\ns_waitcnt lgkmcnt(0)")
    srd(a,8,24,0,921600); srd(a,12,26,0,921600); srd(a,16,6,WT_OFF,WT_SZ)
    a("""s_lshr_b32 s24, s20, 2
    s_and_b32 s25, s20, 3
    v_lshlrev_b32 v2, 4, v1
    s_cmp_ge_u32 s3, 8
    s_cbranch_scc1 Lwt2
    s_lshr_b32 s28, s3, 2
    s_lshl_b32 s28, s28, 4
    s_and_b32 s29, s3, 3
    s_add_u32 s28, s28, s29
    s_lshl_b32 s29, s25, 2
    s_add_u32 s28, s28, s29
    s_lshl_b32 s28, s28, 2
    s_add_u32 s28, s28, s24
    s_mul_i32 s28, s28, 7200
    s_lshl_b32 s30, s3, 13
    s_add_u32 s29, s28, 4096""")
    for ri in range(2):
        for hf in range(2):
            a(f"s_add_u32 m0, s30, {ri*65536+hf*4096}\ns_nop 0")
            for q in range(4): a(f"buffer_load_dwordx4 v2, s[{8+4*ri}:{11+4*ri}], s{28+hf} offen offset:{q*1024} lds")
    a("""Lwt2:
    v_and_b32 v3, 15, v1
    v_lshrrev_b32 v4, 4, v1
    s_lshl_b32 s28, s3, 2
    v_add_u32 v4, s28, v4
    v_mul_u32_u24 v5, 450, v3
    v_lshl_add_u32 v5, v4, 1, v5
    v_add_u32 v6, 65536, v5
    v_lshlrev_b32 v7, 13, v4
    v_lshl_add_u32 v7, v3, 5, v7
    s_lshl_b32 s29, s24, 2
    s_add_u32 s29, s29, s25
    s_lshl_b32 s29, s29, 9
    s_mov_b32 s30, 0
    s_waitcnt vmcnt(0)
    s_barrier
    Lwt3:""")
    for j in range(8): a(f"ds_read_u16 v{16+j}, v5 offset:{j*8192}\nds_read_u16 v{24+j}, v6 offset:{j*8192}")
    a("""v_add_u32 v5, 96, v5
    v_add_u32 v6, 96, v6
    s_add_u32 s30, s30, 1
    s_waitcnt lgkmcnt(0)""")
    for j in range(8): a(f"v_lshl_or_b32 v{8+j}, v{24+j}, 16, v{16+j}")
    a("""buffer_store_dwordx4 v[8:11], v7, s[16:19], s29 offen STF
    buffer_store_dwordx4 v[12:15], v7, s[16:19], s29 offen offset:16 STF
    s_add_u32 s29, s29, 393216
    s_cmp_lt_u32 s30, 5
    s_cbranch_scc1 Lwt3""")
def k1():
    a=Asm()
    stamp(a,0)
    a(f"""s_cmp_ge_u32 s2, 256
    s_cbranch_scc1 Lend1
    s_load_dwordx2 s[8:9], s[0:1], 0
    s_load_dwordx2 s[12:13], s[0:1], 32
    s_load_dwordx2 s[6:7], s[0:1], 64
    v_lshrrev_b32 v2, 6, v0
    v_and_b32 v1, 63, v0
    v_readfirstlane_b32 s3, v2
    s_lshr_b32 s28, s2, 3
    s_and_b32 s20, s2, 3
    s_lshl_b32 s20, s20, 2
    s_and_b32 s29, s28, 3
    s_add_u32 s20, s20, s29
    s_lshr_b32 s21, s28, 2
    s_and_b32 s29, s2, 4
    s_lshl_b32 s29, s29, 1
    s_add_u32 s21, s21, s29
    s_mov_b32 s10, 0x1C0000
    s_mov_b32 s11, 0x20000
    s_mov_b32 s14, {448*3584}
    s_mov_b32 s15, 0x20000
    s_mov_b32 s38, {ST}
    s_mov_b32 s39, {-3*ST}
    s_and_b32 s22, s3, 3
    s_mov_b32 s23, 3584
    s_waitcnt lgkmcnt(0)
    s_cmp_eq_u32 s21, 15
    s_cbranch_scc1 Lwt
    s_cmp_ge_u32 s3, 8
    s_cbranch_scc1 Lstat
    s_mov_b32 s40, s21
    s_cmp_ge_u32 s21, 12
    s_cbranch_scc1 LisF
    s_cmp_ge_u32 s3, 4
    s_cbranch_scc0 LgW
    s_branch Lload
    LisF:
    s_sub_u32 s21, s21, 12
    s_cmp_ge_u32 s3, 4
    s_cbranch_scc0 LgF
    s_mov_b32 s23, 896""")
    tab_srd(a,12,'k1')
    a("Lload:"); loader(a)
    a("Lstat:"); stats(a)
    a("LgW:"); gemm(a,False)
    a("LgF:"); gemm(a,True)
    a("Lwt:"); wtrans(a)
    a("Lfin1:"); flush(a,0,6,3)
    a("Lend1:\ns_endpgm")
    return a.text()
```

```python
from common import *
from k1 import swap23
K2_LDS=65536
def mf16(a,D,A,B,C=None):
    c = f"v[{D}:{D+3}]" if C is None else C
    a(f"v_mfma_f32_16x16x32_bf16 v[{D}:{D+3}], v[{A}:{A+3}], v[{B}:{B+3}], {c}")
def fft(a):
    srd(a,8,6,X1_OFF,X1_SZ); srd(a,12,6,WT_OFF,WT_SZ); srd(a,16,6,YT_OFF,YT_SZ)
    a(f"""s_sub_u32 s20, s2, 256
    s_lshl_b32 s24, s20, 13
    s_add_u32 s25, s24, 4096
    s_mov_b32 s26, {hex(f32(2/917504))}
    s_cmp_eq_u32 s20, 224
    s_cselect_b32 s24, 4096, s24
    s_cselect_b32 s27, 0, s20
    s_cmp_eq_u32 s27, 0
    s_cselect_b32 s25, 0x40000000, s25
    s_cselect_b32 s26, {hex(f32(1/917504))}, s26
    v_and_b32 v2, 15, v1
    v_lshrrev_b32 v3, 4, v1
    v_lshlrev_b32 v4, 7, v2
    v_lshl_add_u32 v5, v3, 4, v4
    v_lshlrev_b32 v6, 5, v0
    s_lshl_b32 s27, s20, 13""")
    for blk in range(2):
        for ks in range(2):
            a(f"buffer_load_dwordx4 v[{8+blk*8+ks*4}:{11+blk*8+ks*4}], v5, s[8:11], s24 offen offset:{blk*2048+ks*64}")
            a(f"buffer_load_dwordx4 v[{24+blk*8+ks*4}:{27+blk*8+ks*4}], v5, s[8:11], s25 offen offset:{blk*2048+ks*64}")
    a("buffer_load_dwordx4 v[40:43], v6, s[12:15], s27 offen\nbuffer_load_dwordx4 v[44:47], v6, s[12:15], s27 offen offset:16")
    a("""v_cvt_f32_u32 v152, v2
    v_cvt_f32_u32 v153, v3
    s_lshl_b32 s28, s22, 4
    v_cvt_f32_u32 v155, s28
    v_add_f32 v154, v152, v155""")
    def cs4(step, rev, C, S, N):
        for j in range(4):
            a(f"v_cos_f32 v{160+j}, v{rev}\nv_sin_f32 v{164+j}, v{rev}\nv_add_f32 v{rev}, v{rev}, v{step}")
        for j in range(2):
            a(f"v_cvt_pk_bf16_f32 v{C+j}, v{160+2*j}, v{161+2*j}\nv_cvt_pk_bf16_f32 v{S+j}, v{164+2*j}, v{165+2*j}")
        for j in range(2): a(f"v_xor_b32 v{N+j}, s29, v{S+j}")
    a(f"s_mov_b32 s29, 0x80008000\nv_mul_f32 v156, {hex(f32(1/64))}, v154\nv_mul_f32 v157, 8.0, v153" .replace("8.0",hex(f32(8.0))))
    for ks in range(2):
        if ks==0: a("v_mul_f32 v158, v156, v157")
        else: a(f"v_add_f32 v158, {hex(f32(32.0))}, v157\nv_mul_f32 v158, v156, v158")
        cs4(156,158,48+4*ks,56+4*ks,64+4*ks); cs4(156,158,50+4*ks,58+4*ks,66+4*ks)
    a(f"v_mul_f32 v157, 4.0, v153\nv_mul_f32 v156, {hex(f32(1/2048))}, v154")
    for blk in range(2):
        if blk==0: a("v_mul_f32 v158, v156, v157")
        else: a(f"v_add_f32 v158, {hex(f32(16.0))}, v157\nv_mul_f32 v158, v156, v158")
        for i in range(4): a(f"v_cos_f32 v{96+4*blk+i}, v158\nv_sin_f32 v{104+4*blk+i}, v158\nv_add_f32 v158, v158, v156")
    for blk in range(2):
        if blk==0: a(f"v_mul_f32 v156, {hex(f32(1/32))}, v152")
        else: a(f"v_add_f32 v156, 0.5, v156")
        for jj in range(2):
            if jj==0: a("v_mul_f32 v158, v156, v157")
            else: a(f"v_add_f32 v158, {hex(f32(16.0))}, v157\nv_mul_f32 v158, v156, v158")
            cs4(156,158,72+4*blk+2*jj,80+4*blk+2*jj,88+4*blk+2*jj)
    a("v_add_f32 v157, v157, v155")
    for blk in range(2):
        if blk==0: a(f"v_mul_f32 v156, {hex(f32(1/2048))}, v152")
        else: a(f"v_add_f32 v156, {hex(f32(16/2048))}, v156")
        a("v_mul_f32 v158, v156, v157")
        for i in range(4): a(f"v_cos_f32 v{112+4*blk+i}, v158\nv_sin_f32 v{120+4*blk+i}, v158\nv_add_f32 v158, v158, v156")
    for r in range(112,128): a(f"v_mul_f32 v{r}, s26, v{r}")
    a("""v_mul_u32_u24 v7, 144, v2
    s_lshl_b32 s28, s22, 5
    v_lshl_add_u32 v6, v3, 3, v7
    v_add_u32 v6, s28, v6
    v_lshl_add_u32 v7, v3, 4, v7
    v_lshl_add_u32 v4, v3, 3, v4
    v_add_u32 v4, s28, v4""")
    DR,DI=128,136
    stamp(a,1)
    a("s_waitcnt vmcnt(2)")
    stamp(a,2)
    for ks in range(2):
        for blk in range(2):
            XR=8+blk*8+ks*4; XI=24+blk*8+ks*4
            mf16(a,DR+4*blk,XR,48+4*ks,'0' if ks==0 else None); mf16(a,DI+4*blk,XI,48+4*ks,'0' if ks==0 else None)
        for blk in range(2):
            XR=8+blk*8+ks*4; XI=24+blk*8+ks*4
            mf16(a,DR+4*blk,XI,56+4*ks); mf16(a,DI+4*blk,XR,64+4*ks)
    def cmul(C,S,sgn):
        a("s_nop 6")
        n1,n2=('-','') if sgn>0 else ('','-')
        for j in range(0,8,2):
            a(f"v_pk_mul_f32 v[{152+j}:{153+j}], v[{DR+j}:{DR+j+1}], v[{C+j}:{C+j+1}]")
            a(f"v_pk_mul_f32 v[{160+j}:{161+j}], v[{DI+j}:{DI+j+1}], v[{C+j}:{C+j+1}]")
        for j in range(0,8,2):
            m1=" neg_lo:[1,0,0] neg_hi:[1,0,0]" if sgn>0 else ""
            m2=" neg_lo:[1,0,0] neg_hi:[1,0,0]" if sgn<0 else ""
            a(f"v_pk_fma_f32 v[{152+j}:{153+j}], v[{DI+j}:{DI+j+1}], v[{S+j}:{S+j+1}], v[{152+j}:{153+j}]{m1}")
            a(f"v_pk_fma_f32 v[{160+j}:{161+j}], v[{DR+j}:{DR+j+1}], v[{S+j}:{S+j+1}], v[{160+j}:{161+j}]{m2}")
        for j in range(4):
            a(f"v_cvt_pk_bf16_f32 v{144+j}, v{152+2*j}, v{153+2*j}\nv_cvt_pk_bf16_f32 v{148+j}, v{160+2*j}, v{161+2*j}")
        a("s_nop 1")
    cmul(96,104,-1)
    for blk in range(2): mf16(a,DR+4*blk,72+4*blk,144,'0'); mf16(a,DI+4*blk,72+4*blk,148,'0')
    for blk in range(2): mf16(a,DR+4*blk,80+4*blk,148); mf16(a,DI+4*blk,88+4*blk,144)
    a("s_waitcnt vmcnt(0)")
    for j in range(8): a(f"v_lshlrev_b32 v{8+j}, 16, v{40+j}\nv_and_b32 v{16+j}, 0xffff0000, v{40+j}")
    cmul(8,16,+1)
    for blk in range(2): mf16(a,DR+4*blk,144,72+4*blk,'0'); mf16(a,DI+4*blk,148,72+4*blk,'0')
    for blk in range(2): mf16(a,DR+4*blk,148,88+4*blk); mf16(a,DI+4*blk,144,80+4*blk)
    cmul(112,120,+1)
    for blk in range(2):
        a(f"ds_write_b64 v6, v[{144+2*blk}:{145+2*blk}] offset:{blk*2304}\nds_write_b64 v6, v[{148+2*blk}:{149+2*blk}] offset:{4608+blk*2304}")
    stamp(a,3)
    a("s_waitcnt lgkmcnt(0)\ns_barrier")
    stamp(a,4)
    for ks in range(2):
        for blk in range(2):
            a(f"ds_read_b128 v[{8+blk*8+ks*4}:{11+blk*8+ks*4}], v7 offset:{blk*2304+ks*64}")
            a(f"ds_read_b128 v[{24+blk*8+ks*4}:{27+blk*8+ks*4}], v7 offset:{4608+blk*2304+ks*64}")
    for ks in range(2):
        a(f"s_waitcnt lgkmcnt({4-4*ks})")
        for blk in range(2):
            XR=8+blk*8+ks*4; XI=24+blk*8+ks*4
            mf16(a,DR+4*blk,48+4*ks,XR,'0' if ks==0 else None); mf16(a,DI+4*blk,48+4*ks,XI,'0' if ks==0 else None)
        for blk in range(2):
            XR=8+blk*8+ks*4; XI=24+blk*8+ks*4
            mf16(a,DR+4*blk,64+4*ks,XI); mf16(a,DI+4*blk,56+4*ks,XR)
    a("s_nop 6")
    for j in range(4):
        a(f"v_cvt_pk_bf16_f32 v{144+j}, v{DR+2*j}, v{DR+2*j+1}\nv_cvt_pk_bf16_f32 v{148+j}, v{DI+2*j}, v{DI+2*j+1}")
    for blk in range(2):
        a(f"buffer_store_dwordx2 v[{144+2*blk}:{145+2*blk}], v4, s[16:19], s24 offen offset:{blk*2048} STF")
        a(f"buffer_store_dwordx2 v[{148+2*blk}:{149+2*blk}], v4, s[16:19], s25 offen offset:{blk*2048} STF")
def gemm2(a):
    srd(a,8,6,H_OFF,H_SZ); srd(a,12,4,0,1792*896); srd(a,16,6,P_OFF,P_SZ)
    a("""s_and_b32 s20, s2, 3
    s_lshr_b32 s28, s2, 3
    s_and_b32 s21, s28, 3
    s_lshr_b32 s28, s28, 2
    s_and_b32 s29, s2, 4
    s_lshl_b32 s29, s29, 1
    s_add_u32 s28, s28, s29
    s_lshl_b32 s28, s28, 2
    s_add_u32 s23, s28, s22
    s_mul_i32 s24, s23, 112
    s_mul_i32 s28, s20, 28
    s_add_u32 s24, s24, s28
    s_lshl_b32 s24, s24, 10
    s_mul_i32 s30, s21, 7
    s_add_u32 s30, s30, 1
    s_lshr_b32 s30, s30, 1
    s_mul_i32 s25, s20, 448
    s_lshl_b32 s28, s22, 4
    s_add_u32 s25, s25, s28
    s_mul_i32 s25, s25, 896
    s_lshl_b32 s28, s30, 6
    s_add_u32 s25, s25, s28
    s_add_u32 s27, s25, 192
    s_bitcmp1_b32 s21, 0
    s_cselect_b32 s27, 0x40000000, s27
    s_lshl_b32 s26, s22, 12
    v_lshlrev_b32 v2, 4, v1
    v_lshrrev_b32 v4, 2, v1
    v_mul_u32_u24 v4, 896, v4
    v_and_b32 v5, 3, v1
    v_lshl_add_u32 v4, v5, 4, v4""")
    def lda(ch):
        for e in range(4): a(f"buffer_load_dwordx4 v[{64+16*ch+4*e}:{67+16*ch+4*e}], v2, s[8:11], s24 offen offset:{e*1024}")
        a("s_add_u32 s24, s24, 4096")
    def ldb(ch):
        g=[]
        for b in range(4):
            src = f"s_add_u32 s28, s25, {ch*64*896+b*64}" if b<3 else f"s_add_u32 s28, s27, {ch*64*896}"
            g.append(f"s_add_u32 m0, s26, {(ch&3)*16384+b*1024}\n{src}\nbuffer_load_dwordx4 v4, s[12:15], s28 offen lds")
        return g
    for ch in range(4):
        lda(ch)
        for x in ldb(ch): a(x)
    for ch in range(4,7): lda(ch)
    a("""v_lshrrev_b32 v16, 5, v1
    v_lshlrev_b32 v16, 3, v16
    v_bfe_u32 v17, v1, 2, 2
    v_add_u32 v16, v16, v17
    v_lshlrev_b32 v16, 6, v16
    v_bfe_u32 v17, v1, 4, 1
    v_and_b32 v18, 3, v1
    v_lshl_add_u32 v17, v17, 2, v18
    v_lshlrev_b32 v17, 2, v17""")
    swap23(a,17,17,18)
    a("v_lshl_add_u32 v16, v17, 1, v16")
    def reads(s):
        B=24+16*(s&1); base=((s>>2)&3)*16384+(s&3)*4096; g=[]
        for b in range(4):
            g.append(f"ds_read_b64_tr_b16 v[{B+4*b}:{B+4*b+1}], v16 offset:{base+b*1024}")
            g.append(f"ds_read_b64_tr_b16 v[{B+4*b+2}:{B+4*b+3}], v16 offset:{base+b*1024+256}")
        return g
    W=[36,28,24,20,8,4,0]
    stamp(a,1)
    a(f"s_waitcnt vmcnt({W[0]})\ns_barrier")
    stamp(a,2)
    for x in reads(0): a(x)
    for s in range(28):
        ch=s>>2; B=24+16*(s&1); A=64+4*s; fill=[]
        if (s&3)<3: a("s_waitcnt lgkmcnt(0)"); fill=reads(s+1)
        elif ch<6:
            a(f"s_waitcnt vmcnt({W[ch+1]}) lgkmcnt(0)\ns_barrier"); fill=reads(s+1)
            if ch+4<7: fill+=ldb(ch+4)
        else: a("s_waitcnt lgkmcnt(0)")
        n=len(fill); k=0
        for b in range(4):
            D=176+16*b
            a(f"v_mfma_f32_32x32x16_bf16 v[{D}:{D+15}], v[{B+4*b}:{B+4*b+3}], v[{A}:{A+3}], "+("0" if s==0 else f"v[{D}:{D+15}]"))
            e=min(n,(n*(b+1)+2)//3)
            while k<e: a(fill[k]); k+=1
    stamp(a,3)
    a("""s_lshl_b32 s28, s20, 6
    s_add_u32 s28, s28, s23
    s_mul_i32 s28, s28, 28
    s_lshl_b32 s30, s30, 1
    s_add_u32 s28, s28, s30
    s_lshl_b32 s28, s28, 10
    s_nop 7""")
    for b in range(4):
        D=176+16*b
        if b==3: a("s_bitcmp1_b32 s21, 0\ns_cbranch_scc1 Lfin2")
        for j in range(8): a(f"v_cvt_pk_bf16_f32 v{D+j}, v{D+2*j}, v{D+2*j+1}")
        a(f"buffer_store_dwordx4 v[{D}:{D+3}], v2, s[16:19], s28 offen offset:{(b&1)*2048} STF")
        a(f"buffer_store_dwordx4 v[{D+4}:{D+7}], v2, s[16:19], s28 offen offset:{(b&1)*2048+1024} STF")
        if b==1: a("s_add_u32 s28, s28, 4096")
    a("s_branch Lfin2")
def k2():
    a=Asm()
    stamp(a,0)
    a("""s_cmp_ge_u32 s2, 481
    s_cbranch_scc1 Lend2
    s_load_dwordx2 s[4:5], s[0:1], 40
    s_load_dwordx2 s[6:7], s[0:1], 64
    v_lshrrev_b32 v2, 6, v0
    v_and_b32 v1, 63, v0
    v_readfirstlane_b32 s22, v2
    s_cmp_ge_u32 s2, 256
    s_waitcnt lgkmcnt(0)
    s_cbranch_scc1 Lfft""")
    gemm2(a)
    a("Lfft:"); fft(a)
    a("Lfin2:"); flush(a,1,6,22)
    a("Lend2:\ns_endpgm")
    return a.text()
```

```python
from common import *
from k1 import swap23
K3_LDS=114688; FB=57344
def k3():
    a=Asm()
    stamp(a,0)
    a("""s_cmp_ge_u32 s2, 224
    s_cbranch_scc1 Lend3
    s_load_dwordx2 s[4:5], s[0:1], 0
    s_load_dwordx2 s[6:7], s[0:1], 64
    s_load_dwordx2 s[20:21], s[0:1], 48
    v_lshrrev_b32 v2, 6, v0
    v_and_b32 v1, 63, v0
    v_readfirstlane_b32 s3, v2
    s_lshr_b32 s28, s2, 3
    s_and_b32 s30, s2, 7
    s_lshl_b32 s30, s30, 2
    s_and_b32 s29, s28, 3
    s_add_u32 s30, s30, s29
    s_lshr_b32 s31, s28, 2
    s_and_b32 s32, s3, 1
    s_lshr_b32 s33, s3, 1""")
    tab_srd(a,12,'k3')
    a("""s_lshl_b32 s34, s30, 1
    s_add_u32 s34, s34, s32
    s_mul_i32 s34, s34, 28
    s_lshl_b32 s28, s31, 1
    s_add_u32 s28, s28, s33
    s_lshl_b32 s29, s28, 1
    s_add_u32 s34, s34, s29
    s_lshl_b32 s34, s34, 10
    s_lshl_b32 s35, s28, 6
    s_lshl_b32 s28, s32, 10
    s_add_u32 s28, s28, s30
    s_mul_i32 s28, s28, 896
    s_add_u32 s35, s35, s28
    v_lshlrev_b32 v2, 4, v1
    v_and_b32 v5, 31, v1
    v_lshrrev_b32 v6, 5, v1
    v_mul_u32_u24 v3, 28672, v5
    v_lshl_add_u32 v3, v6, 4, v3
    v_lshrrev_b32 v8, 3, v1
    v_and_b32 v9, 7, v1
    v_lshrrev_b32 v10, 4, v1
    v_xor_b32 v11, v9, v10
    v_mul_u32_u24 v12, 896, v8
    v_lshl_add_u32 v12, v11, 4, v12
    v_xor_b32 v13, 64, v12
    v_and_b32 v10, 1, v10
    v_lshlrev_b32 v10, 2, v10
    v_xor_b32 v9, v9, v10
    v_lshlrev_b32 v14, 12, v8
    v_lshl_add_u32 v14, v9, 4, v14
    s_lshl_b32 s36, s3, 16
    s_lshl_b32 s28, s30, 7
    s_add_u32 s36, s36, s28
    s_lshl_b32 s37, s31, 2
    s_add_u32 s37, s37, s3
    s_mul_i32 s37, s37, 14336
    s_lshl_b32 s38, s3, 11
    s_waitcnt lgkmcnt(0)""")
    srd(a,8,6,P_OFF,P_SZ); srd(a,16,6,YT_OFF,YT_SZ); srd(a,24,4,0,0x1C0000)
    a("s_mov_b32 s22, 0x1C0000\ns_mov_b32 s23, 0x20000")
    for ks in range(4):
        for u in range(2): a(f"buffer_load_dwordx4 v[{32+8*ks+4*u}:{35+8*ks+4*u}], v2, s[8:11], s34 offen offset:{u*1024}")
        if ks<3: a(f"s_add_u32 s34, s34, {64*28*1024}")
    for u in range(2): a(f"buffer_load_dwordx4 v[{64+4*u}:{67+4*u}], v3, s[24:27], s35 offen offset:{u*32}")
    a("s_mov_b32 s39, 0\nLdma3:")
    a(f"""s_add_u32 m0, s38, 0
    s_add_u32 s28, s36, 32768
    buffer_load_dwordx4 v14, s[16:19], s36 offen lds
    s_add_u32 m0, s38, 1024
    s_add_u32 s36, s36, 262144
    buffer_load_dwordx4 v14, s[16:19], s28 offen lds
    s_add_u32 m0, s38, {FB}
    s_add_u32 s28, s37, 7168
    buffer_load_dwordx4 v12, s[12:15], s37 offen lds
    s_add_u32 m0, s38, {FB+1024}
    s_add_u32 s37, s37, 128
    buffer_load_dwordx4 v13, s[12:15], s28 offen lds
    s_add_u32 s38, s38, 8192
    s_add_u32 s39, s39, 1
    s_cmp_lt_u32 s39, 7
    s_cbranch_scc1 Ldma3""")
    swap23(a,5,5,7)
    a(f"""s_lshl_b32 s28, s33, 12
    s_add_u32 s28, s28, {FB}
    v_bfe_u32 v7, v5, 1, 3
    v_lshlrev_b32 v5, 7, v5
    v_add_u32 v5, s28, v5""")
    for e in range(4): a(f"v_add_u32 v8, {2*e}, v6\nv_xor_b32 v8, v8, v7\nv_lshl_add_u32 v{16+e}, v8, 4, v5")
    a("""v_bfe_u32 v8, v1, 2, 2
    v_lshl_add_u32 v9, v6, 3, v8
    v_lshlrev_b32 v9, 7, v9
    v_lshrrev_b32 v8, 1, v8
    v_xor_b32 v8, s32, v8
    v_lshl_add_u32 v9, v8, 6, v9
    v_bfe_u32 v8, v1, 4, 1
    v_lshl_add_u32 v9, v8, 5, v9
    v_and_b32 v8, 3, v1
    v_lshl_add_u32 v20, v8, 3, v9""")
    a(f"s_mov_b32 s28, 0xffff0000\ns_mov_b32 s29, {hex(f32(-1.4426950408889634))}")
    stamp(a,1); a("s_waitcnt vmcnt(30)"); stamp(a,2)
    for j in range(8):
        for ks in range(4): a(f"v_lshlrev_b32 v{96+2*ks}, 16, v{32+8*ks+j}\nv_and_b32 v{97+2*ks}, s28, v{32+8*ks+j}")
        G=80+2*j
        a(f"""v_pk_add_f32 v[96:97], v[96:97], v[98:99]
        v_pk_add_f32 v[100:101], v[100:101], v[102:103]
        v_pk_add_f32 v[96:97], v[96:97], v[100:101]
        v_cvt_pk_bf16_f32 v98, v96, v97
        v_lshlrev_b32 v96, 16, v98
        v_and_b32 v97, s28, v98
        v_mul_f32 v98, s29, v96
        v_mul_f32 v99, s29, v97
        v_exp_f32 v98, v98
        v_exp_f32 v99, v99
        s_nop 0
        v_pk_add_f32 v[98:99], v[98:99], 1.0 op_sel_hi:[1,0]
        v_rcp_f32 v98, v98
        v_rcp_f32 v99, v99
        s_nop 0
        v_pk_mul_f32 v[96:97], v[96:97], v[98:99]
        v_cvt_pk_bf16_f32 v98, v96, v97
        v_lshlrev_b32 v{G}, 16, v98
        v_and_b32 v{G+1}, s28, v98""")
    def reads(s):
        b=s%3; F=32+8*b; Y=36+8*b
        return [f"ds_read_b128 v[{F}:{F+3}], v{16+(s&3)} offset:{(s>>2)*8192}",
                f"ds_read_b64_tr_b16 v[{Y}:{Y+1}], v20 offset:{s*2048}",
                f"ds_read_b64_tr_b16 v[{Y+2}:{Y+3}], v20 offset:{s*2048+512}"]
    def need(s):
        if s<28:
            if s%4==0: a(f"s_waitcnt vmcnt({(6-s//4)*4})\ns_barrier")
            for x in reads(s): a(x)
    stamp(a,3); a("s_waitcnt vmcnt(24)\ns_barrier"); stamp(a,4)
    need(0); need(1)
    for s in range(28):
        b=s%3; F=32+8*b; Y=36+8*b
        need(s+2)
        a(f"s_waitcnt lgkmcnt({3*min(2,27-s)})")
        a(f"v_mfma_f32_32x32x16_bf16 v[112:127], v[{F}:{F+3}], v[{Y}:{Y+3}], "+("0" if s==0 else "v[112:127]"))
    stamp(a,5)
    for j in range(8): a(f"v_lshlrev_b32 v{96+2*j}, 16, v{64+j}\nv_and_b32 v{97+2*j}, s28, v{64+j}")
    for j in range(8): a(f"v_cvt_pk_bf16_f32 v{32+j}, v{112+2*j}, v{113+2*j}")
    for j in range(8): a(f"v_lshlrev_b32 v{112+2*j}, 16, v{32+j}\nv_and_b32 v{113+2*j}, s28, v{32+j}")
    for j in range(8): a(f"v_pk_mul_f32 v[{112+2*j}:{113+2*j}], v[{112+2*j}:{113+2*j}], v[{80+2*j}:{81+2*j}]")
    for j in range(8): a(f"v_cvt_pk_bf16_f32 v{32+j}, v{112+2*j}, v{113+2*j}")
    for j in range(8): a(f"v_lshlrev_b32 v{112+2*j}, 16, v{32+j}\nv_and_b32 v{113+2*j}, s28, v{32+j}")
    for j in range(8): a(f"v_pk_add_f32 v[{112+2*j}:{113+2*j}], v[{112+2*j}:{113+2*j}], v[{96+2*j}:{97+2*j}]")
    for j in range(8): a(f"v_cvt_pk_bf16_f32 v{32+j}, v{112+2*j}, v{113+2*j}")
    for u in range(2): a(f"buffer_store_dwordx4 v[{32+4*u}:{35+4*u}], v3, s[20:23], s35 offen offset:{u*32}")
    flush(a,2,6,3)
    a("Lend3:\ns_endpgm")
    return a.text()
```

```python
import sys
from common import *
import k1,k2,k3
out=sys.argv[1] if len(sys.argv)>1 else 'recurrent_scan__spectral_gfnet__dense_activation_relu__prompt.s'
stf=sys.argv[2] if len(sys.argv)>2 else ''
hdr=open('recurrent_scan__spectral_gfnet__dense_activation_relu__prompt.s.ref').read().split('; Override launch')[0]
s=hdr
s+=f"; @launch kernel=k1_kernel grid=(256,1,1) block=(768,1,1) lds={k1.K1_LDS}\n"
s+=f"; @launch kernel=k2_kernel grid=(481,1,1) block=(256,1,1) lds={k2.K2_LDS}\n"
s+=f"; @launch kernel=k3_kernel grid=(224,1,1) block=(256,1,1) lds={k3.K3_LDS}\n"
s+='.amdgcn_target "amdgcn-amd-amdhsa--gfx950"\n.text\n'
s+=head('k1_kernel')+k1.k1()+head('k2_kernel')+k2.k2()+head('k3_kernel')+k3.k3()
s=s.replace(' STF',(' '+stf) if stf else '')
sth=sys.argv[3] if len(sys.argv)>3 else ''
s=s.replace(' STH',(' '+sth) if sth else '')
s+=ftable()
s+='.section .rodata,"a"\n'+desc('k1_kernel',160)+desc('k2_kernel',240)+desc('k3_kernel',128)
open(out,'w').write(s)
```

```python
from common import *
import os
ST=36864; CSP=147456; CSF=152576; RST=153216; K1_LDS=154752
def swap23(a, d, s, t):
    a(f"v_lshrrev_b32 v{t}, 1, v{s}\nv_xor_b32 v{t}, v{t}, v{s}\nv_and_b32 v{t}, 4, v{t}\nv_mul_u32_u24 v{t}, 3, v{t}\nv_xor_b32 v{d}, v{s}, v{t}")
def tr_addr(a, d, perm):
    a(f"""v_lshrrev_b32 v{d}, 5, v1
    v_bfe_u32 v17, v1, 2, 2
    v_lshl_add_u32 v{d}, v{d}, 3, v17
    v_lshlrev_b32 v{d}, 6, v{d}
    v_bfe_u32 v17, v1, 4, 1
    v_and_b32 v18, 3, v1
    v_lshl_add_u32 v17, v17, 2, v18
    v_lshlrev_b32 v17, 2, v17""")
    if perm: swap23(a,17,17,18)
    a(f"v_lshl_add_u32 v{d}, v17, 1, v{d}")
def a_addr(a, d, perm, sbase):
    a("v_and_b32 v5, 31, v1")
    if perm: swap23(a,5,5,6)
    a(f"v_lshrrev_b32 v6, 5, v1\nv_bfe_u32 v7, v5, 1, 3\nv_lshlrev_b32 v5, 7, v5\nv_add_u32 v5, s{sbase}, v5")
    for e in range(4): a(f"v_add_u32 v17, {2*e}, v6\nv_xor_b32 v17, v17, v7\nv_lshl_add_u32 v{d+e}, v17, 4, v5")
def pref(a):
    if os.environ.get('NOPF'): return
    a("""s_load_dwordx2 s[12:13], s[0:1], 40
    s_mov_b32 s14, 1605632
    s_lshr_b32 s28, s2, 3
    s_lshl_b32 s28, s28, 2
    s_add_u32 s28, s28, s22
    s_mul_i32 s28, s28, 6272
    s_bitcmp1_b32 s2, 2
    s_cselect_b32 s29, 802816, 0
    s_add_u32 s28, s28, s29
    v_lshlrev_b32 v2, 7, v1
    v_cmp_gt_u32 vcc, 49, v1
    s_and_b64 exec, exec, vcc
    s_waitcnt lgkmcnt(0)
    buffer_load_dword v3, v2, s[12:15], s28 offen
    s_barrier
    s_barrier
    s_waitcnt vmcnt(0)""")
def loader(a):
    a(f"""v_lshrrev_b32 v2, 3, v1
    v_mul_u32_u24 v2, 28672, v2
    v_and_b32 v3, 7, v1
    v_lshrrev_b32 v4, 4, v1
    v_xor_b32 v3, v3, v4
    v_lshl_add_u32 v2, v3, 4, v2
    v_xor_b32 v3, 64, v2
    s_and_b32 s28, s22, 1
    s_lshl_b32 s28, s28, 10
    s_lshr_b32 s29, s22, 1
    s_add_u32 s28, s28, s29
    s_lshl_b32 s29, s20, 1
    s_add_u32 s28, s28, s29
    s_mul_i32 s24, s28, 896
    v_lshrrev_b32 v4, 2, v1
    v_mul_lo_u32 v4, s23, v4
    v_and_b32 v5, 3, v1
    v_lshl_add_u32 v4, v5, 4, v4
    s_mul_i32 s25, s22, s23
    s_lshl_b32 s25, s25, 4
    s_mul_i32 s28, s21, 320
    s_add_u32 s25, s25, s28
    s_lshl_b32 s26, s22, 12
    s_mul_i32 s29, s22, 5120
    s_add_u32 s29, s29, 16384
    s_lshl_b32 s23, s23, 6
    s_mov_b32 s27, 0""")
    RM=int(os.environ.get('RM','7')); RS=int(os.environ.get('RS','1'))
    a(f"""s_and_b32 s28, s20, 3
    s_lshl_b32 s28, s28, 1
    s_lshr_b32 s30, s2, 5
    s_add_u32 s30, s28, s30
    s_mul_i32 s28, s30, {(255+RM)//RM}
    s_lshr_b32 s28, s28, 8
    s_mul_i32 s28, s28, {RM}
    s_sub_u32 s30, s30, s28
    s_mul_i32 s30, s30, {RS}
    s_lshl_b32 s28, s30, 7
    s_add_u32 s24, s24, s28
    s_mul_i32 s28, s30, s23
    s_add_u32 s25, s25, s28
    s_mul_i32 s31, s23, 7""")
    def dma():
        for i in range(4): a(f"s_add_u32 m0, s26, {i*1024}\ns_add_u32 s28, s24, {i*8*28672}\nbuffer_load_dwordx4 v{2+(i&1)}, s[8:11], s28 offen lds")
        for b in range(5): a(f"s_add_u32 m0, s29, {b*1024}\ns_add_u32 s28, s25, {b*64}\nbuffer_load_dwordx4 v4, s[12:15], s28 offen lds")
        a(f"""s_add_u32 s27, s27, 1
        s_add_u32 s24, s24, 128
        s_add_u32 s25, s25, s23
        s_add_u32 s30, s30, 1
        s_cmp_eq_u32 s30, 7
        s_cselect_b32 s28, 896, 0
        s_cselect_b32 s32, s31, 0
        s_sub_u32 s24, s24, s28
        s_sub_u32 s25, s25, s32
        s_and_b32 s28, s27, 3
        s_cselect_b32 s28, s38, s39
        s_add_u32 s26, s26, s28
        s_add_u32 s29, s29, s28""")
    dma(); dma(); a("s_waitcnt vmcnt(9)"); stamp(a,1); a("s_barrier")
    if os.environ.get('D2'):
        for i in range(1,7):
            if i<6: dma()
            a(f"s_waitcnt vmcnt({9 if i<6 else 0})")
            if i in (1,2,3,5): stamp(a,{0:1,1:2,2:3,3:4,5:5}[i])
            a("s_barrier")
    else:
        dma()
        for i in range(1,7):
            if i<5: dma()
            a(f"s_waitcnt vmcnt({min(18,9*(6-i))})")
            if i in (1,2,3,5): stamp(a,{0:1,1:2,2:3,3:4,5:5}[i])
            a("s_barrier")
    pref(a)
    a("s_branch Lfin1")
def stats(a):
    a("s_lshl_b32 s28, s22, 12"); a_addr(a,8,False,28); tr_addr(a,12,False)
    a("s_mul_i32 s31, s22, 5120\ns_add_u32 s31, s31, 16384\nv_add_u32 v12, s31, v12\nv_mov_b32 v79, 0x3f803f80")
    for r in range(72,79): a(f"v_mov_b32 v{r}, 0")
    a("s_mov_b32 s41, 0xffff0000")
    def dots(o):
        if os.environ.get('NODOT'): return
        if os.environ.get('PLAIN'):
            for j in range(16):
                t=60+2*(j&1)
                a(f"v_lshlrev_b32 v{t}, 16, v{o+j}\nv_and_b32 v{t+1}, s41, v{o+j}\nv_add_f32 v72, v72, v{t}\nv_fmac_f32 v73, v{t}, v{t}\nv_add_f32 v70, v70, v{t+1}\nv_fmac_f32 v71, v{t+1}, v{t+1}")
            for j in range(4):
                for b in range(5):
                    t=60+2*(b&1); r=o+16+4*b+j
                    a(f"v_lshlrev_b32 v{t}, 16, v{r}\nv_and_b32 v{t+1}, s41, v{r}\nv_add_f32 v{74+b}, v{74+b}, v{t}\nv_add_f32 v{64+b}, v{64+b}, v{t+1}")
            return
        for j in range(16): a(f"v_dot2c_f32_bf16 v72, v{o+j}, v79\nv_dot2c_f32_bf16 v73, v{o+j}, v{o+j}")
        for j in range(4):
            for b in range(5): a(f"v_dot2c_f32_bf16 v{74+b}, v{o+16+4*b+j}, v79")
    for c in range(7):
        o=24
        a("s_barrier")
        for e in range(4): a(f"ds_read_b128 v[{o+4*e}:{o+3+4*e}], v{8+e}")
        for b in range(5): a(f"ds_read_b64_tr_b16 v[{o+16+4*b}:{o+17+4*b}], v12 offset:{b*1024}\nds_read_b64_tr_b16 v[{o+18+4*b}:{o+19+4*b}], v12 offset:{b*1024+256}")
        if c<6:
            for r in range(8,13): a(f"v_add_u32 v{r}, s{39 if c==3 else 38}, v{r}")
        a("s_waitcnt lgkmcnt(0)")
        dots(24)

    a(f"""v_lshrrev_b32 v6, 5, v1
    s_lshl_b32 s28, s22, 1
    v_add_u32 v6, s28, v6
    v_mul_u32_u24 v6, 640, v6
    v_and_b32 v5, 31, v1
    v_lshl_add_u32 v6, v5, 2, v6
    v_add_u32 v6, {CSP}, v6""")
    for b in range(5): a(f"ds_write_b32 v6, v{74+b} offset:{b*128}")
    a(f"""v_mov_b32 v20, v72
    v_mov_b32 v21, v73
    s_nop 1
    v_permlane32_swap_b32 v72, v20
    v_permlane32_swap_b32 v73, v21
    s_nop 1
    v_add_f32 v72, v72, v20
    v_add_f32 v73, v73, v21
    v_mul_f32 v72, {hex(f32(1/448))}, v72
    v_mul_f32 v73, {hex(f32(1/448))}, v73
    v_fma_f32 v73, -v72, v72, v73
    v_max_f32 v73, 0, v73
    v_cvt_pk_bf16_f32 v72, v72, v73
    v_and_b32 v73, 0xffff0000, v72
    v_lshlrev_b32 v72, 16, v72
    v_add_f32 v73, {hex(f32(1e-5))}, v73
    v_cvt_pk_bf16_f32 v73, v73, v73
    v_and_b32 v73, 0xffff0000, v73
    v_sqrt_f32 v73, v73
    s_waitcnt lgkmcnt(0)
    s_barrier
    v_cvt_pk_bf16_f32 v73, v73, v73
    v_and_b32 v73, 0xffff0000, v73
    v_rcp_f32 v76, v73
    v_and_b32 v6, 255, v0
    v_lshlrev_b32 v6, 2, v6
    v_add_u32 v7, {CSP}, v6""")
    for i in range(8): a(f"ds_read_b32 v{24+i}, v7 offset:{i*640}")
    a(f"""v_mul_f32 v77, v76, v72
    s_mul_i32 s28, s22, 384
    s_add_u32 s28, s28, {RST}
    v_lshl_add_u32 v5, v5, 2, s28
    ds_write_b32 v5, v76
    ds_write_b32 v5, v77 offset:128
    ds_write_b32 v5, v72 offset:256
    s_waitcnt lgkmcnt(3)
    v_add_f32 v24, v24, v25
    v_add_f32 v26, v26, v27
    v_add_f32 v28, v28, v29
    v_add_f32 v30, v30, v31
    v_add_f32 v24, v24, v26
    v_add_f32 v28, v28, v30
    v_add_f32 v24, v24, v28
    v_cmp_gt_u32 vcc, 640, v6
    s_and_saveexec_b64 s[36:37], vcc
    v_add_u32 v7, {CSF}, v6
    ds_write_b32 v7, v24
    s_mov_b64 exec, s[36:37]
    s_waitcnt vmcnt(0) lgkmcnt(0)
    s_barrier
    s_branch Lfin1""")
def gemm(a, isF):
    T='F' if isF else 'W'
    srd(a,16,6,X1_OFF if isF else H_OFF,X1_SZ if isF else H_SZ)
    a("s_lshl_b32 s28, s22, 12"); a_addr(a,8,isF,28); tr_addr(a,12,not isF)
    a("v_add_u32 v12, 16384, v12")
    for r in range(80,160): a(f"v_mov_b32 v{r}, 0")
    def reads(t):
        bf=t&1; A=24+4*bf; B=32+20*bf
        g=[f"ds_read_b128 v[{A}:{A+3}], v{8+t}"]
        for b in range(5):
            g.append(f"ds_read_b64_tr_b16 v[{B+4*b}:{B+4*b+1}], v12 offset:{t*5120+b*1024}")
            g.append(f"ds_read_b64_tr_b16 v[{B+4*b+2}:{B+4*b+3}], v12 offset:{t*5120+b*1024+256}")
        return [] if os.environ.get('NORD') else g
    stamp(a,1)
    a("s_mov_b32 s30, 0\ns_barrier")
    stamp(a,2)
    if os.environ.get('MB'): a("s_memtime s[44:45]\ns_waitcnt lgkmcnt(0)")
    for x in reads(0): a(x)
    a(f"Lloop{T}:")
    for t in range(4):
        bf=t&1; A=24+4*bf; B=32+20*bf
        if t<3:
            a("s_waitcnt lgkmcnt(0)"); fill=reads(t+1)
        else:
            a("s_add_u32 s30, s30, 1\ns_and_b32 s28, s30, 3\ns_cselect_b32 s28, s38, s39\nv_add_u32 v8, s28, v8\nv_add_u32 v12, s28, v12")
            a("s_waitcnt lgkmcnt(0)\ns_barrier")
            fill=reads(0)+[f"v_add_u32 v{r}, s28, v{r}" for r in (9,10,11)]
        n=len(fill); k=0
        for b in range(5):
            D=80+16*b
            if isF: a(f"v_mfma_f32_32x32x16_bf16 v[{D}:{D+15}], v[{A}:{A+3}], v[{B+4*b}:{B+4*b+3}], v[{D}:{D+15}]")
            else:   a(f"v_mfma_f32_32x32x16_bf16 v[{D}:{D+15}], v[{B+4*b}:{B+4*b+3}], v[{A}:{A+3}], v[{D}:{D+15}]")
            if os.environ.get('CDOT'):
                for q in range(3 if b<3 else 2): a(f"v_dot2c_f32_bf16 v{72+q}, v{A+q}, v{A+q}")
            e=min(n,3*(b+1)+(1 if b>=3 else 0)*9)
            while k<e: a(fill[k]); k+=1
    a(f"s_cmp_lt_u32 s30, 7\ns_cbranch_scc1 Lloop{T}")
    stamp(a,3)
    if os.environ.get('MB'):
        a(f"""s_memtime s[46:47]
        s_load_dwordx2 s[48:49], s[0:1], 56
        s_waitcnt lgkmcnt(0)
        s_sub_u32 s46, s46, s44
        s_getreg_b32 s47, hwreg(HW_REG_HW_ID)
        s_mov_b32 s50, 256
        s_mov_b32 s51, 0x20000
        s_cmp_gt_u32 s2, 1
        s_cbranch_scc1 Lmb{T}
        s_lshl_b32 s44, s2, 2
        s_add_u32 s44, s44, s22
        s_lshl_b32 s44, s44, 3
        v_mov_b32 v2, s46
        v_mov_b32 v3, s47
        v_mov_b32 v4, 0
        buffer_store_dwordx2 v[2:3], v4, s[48:51], s44 offen
        Lmb{T}:""")
    a(f"v_lshrrev_b32 v6, 5, v1\nv_and_b32 v5, 31, v1\ns_mul_i32 s29, s22, 384\ns_add_u32 s29, s29, {RST}")
    if not isF:
        a(f"v_lshlrev_b32 v6, 5, v6\nv_add_u32 v6, {CSF}, v6\nv_lshlrev_b32 v7, 4, v1\nv_lshl_add_u32 v5, v5, 2, s29")
        a("s_lshl_b32 s28, s20, 2\ns_add_u32 s28, s28, s22\ns_mul_i32 s28, s28, 112\ns_mul_i32 s30, s21, 10\ns_add_u32 s28, s28, s30\ns_lshl_b32 s28, s28, 10")
        a("s_waitcnt lgkmcnt(0)\ns_barrier\nds_read_b32 v76, v5\nds_read_b32 v72, v5 offset:256")
        def csr(b):
            C=24+16*(b&1)
            for u in range(2):
                for q in range(2): a(f"ds_read_b128 v[{C+8*u+4*q}:{C+8*u+4*q+3}], v6 offset:{b*128+u*64+q*16}")
        csr(0)
        for b in range(5):
            C=24+16*(b&1); D=80+16*b
            if b<4: csr(b+1); a("s_waitcnt lgkmcnt(4)")
            else: a("s_waitcnt lgkmcnt(0)")
            for j in range(0,16,2): a(f"v_pk_fma_f32 v[{D+j}:{D+j+1}], v[{C+j}:{C+j+1}], v[72:73], v[{D+j}:{D+j+1}] op_sel_hi:[1,0,1] neg_lo:[0,1,0] neg_hi:[0,1,0]")
            for j in range(0,16,2): a(f"v_pk_mul_f32 v[{D+j}:{D+j+1}], v[{D+j}:{D+j+1}], v[76:77] op_sel_hi:[1,0]")
            for j in range(8): a(f"v_cvt_pk_bf16_f32 v{D+j}, v{D+2*j}, v{D+2*j+1}")
            for j in range(8): a(f"v_pk_max_i16 v{D+j}, v{D+j}, 0")
            a(f"buffer_store_dwordx4 v[{D}:{D+3}], v7, s[16:19], s28 offen offset:{(b&1)*2048} STH")
            a(f"buffer_store_dwordx4 v[{D+4}:{D+7}], v7, s[16:19], s28 offen offset:{(b&1)*2048+1024} STH")
            if b&1: a("s_add_u32 s28, s28, 4096")
            if b==0: a("s_cmp_eq_u32 s21, 11\ns_cbranch_scc1 Lfin1")
    else:
        a(f"""v_lshl_add_u32 v4, v6, 5, s29
        v_lshlrev_b32 v3, 2, v5
        v_add_u32 v3, {CSF}, v3
        v_lshlrev_b32 v7, 12, v5
        v_lshl_add_u32 v7, v6, 4, v7
        s_mul_i32 s28, s21, 655360
        s_lshl_b32 s30, s20, 8
        s_add_u32 s28, s28, s30
        s_lshl_b32 s30, s22, 6
        s_add_u32 s28, s28, s30
        s_waitcnt lgkmcnt(0)
        s_barrier""")
        for z in range(2):
            for u in range(2):
                for q in range(2): a(f"ds_read_b128 v[{24+16*z+8*u+4*q}:{24+16*z+8*u+4*q+3}], v4 offset:{z*128+u*64+q*16}")
        for b in range(5): a(f"ds_read_b32 v{60+2*b}, v3 offset:{b*128}")
        a("s_waitcnt lgkmcnt(0)")
        for b in range(5):
            D=80+16*b
            for j in range(0,16,2): a(f"v_pk_mul_f32 v[{D+j}:{D+j+1}], v[{D+j}:{D+j+1}], v[{24+j}:{25+j}]")
            for j in range(0,16,2): a(f"v_pk_fma_f32 v[{D+j}:{D+j+1}], v[{40+j}:{41+j}], v[{60+2*b}:{61+2*b}], v[{D+j}:{D+j+1}] op_sel_hi:[1,0,1] neg_lo:[0,1,0] neg_hi:[0,1,0]")
            for j in range(8): a(f"v_cvt_pk_bf16_f32 v{D+j}, v{D+2*j}, v{D+2*j+1}")
            a(f"buffer_store_dwordx4 v[{D}:{D+3}], v7, s[16:19], s28 offen STF")
            a(f"buffer_store_dwordx4 v[{D+4}:{D+7}], v7, s[16:19], s28 offen offset:32 STF")
            if b<4: a("s_add_u32 s28, s28, 131072")
    a("s_branch Lfin1")
def wtrans(a):
    a("s_load_dwordx4 s[24:27], s[0:1], 8\ns_waitcnt lgkmcnt(0)")
    srd(a,8,24,0,921600); srd(a,12,26,0,921600); srd(a,16,6,WT_OFF,WT_SZ)
    a("""s_lshr_b32 s24, s20, 2
    s_and_b32 s25, s20, 3
    v_lshlrev_b32 v2, 4, v1
    s_cmp_ge_u32 s3, 8
    s_cbranch_scc1 Lwt2
    s_lshr_b32 s28, s3, 2
    s_lshl_b32 s28, s28, 4
    s_and_b32 s29, s3, 3
    s_add_u32 s28, s28, s29
    s_lshl_b32 s29, s25, 2
    s_add_u32 s28, s28, s29
    s_lshl_b32 s28, s28, 2
    s_add_u32 s28, s28, s24
    s_mul_i32 s28, s28, 7200
    s_lshl_b32 s30, s3, 13
    s_add_u32 s29, s28, 4096""")
    for ri in range(2):
        for hf in range(2):
            a(f"s_add_u32 m0, s30, {ri*65536+hf*4096}\ns_nop 0")
            for q in range(4): a(f"buffer_load_dwordx4 v2, s[{8+4*ri}:{11+4*ri}], s{28+hf} offen offset:{q*1024} lds")
    a("""Lwt2:
    v_and_b32 v3, 15, v1
    v_lshrrev_b32 v4, 4, v1
    s_lshl_b32 s28, s3, 2
    v_add_u32 v4, s28, v4
    v_mul_u32_u24 v5, 450, v3
    v_lshl_add_u32 v5, v4, 1, v5
    v_add_u32 v6, 65536, v5
    v_lshlrev_b32 v7, 13, v4
    v_lshl_add_u32 v7, v3, 5, v7
    s_lshl_b32 s29, s24, 2
    s_add_u32 s29, s29, s25
    s_lshl_b32 s29, s29, 9
    s_mov_b32 s30, 0
    s_waitcnt vmcnt(0)
    s_barrier
    Lwt3:""")
    for j in range(8): a(f"ds_read_u16 v{16+j}, v5 offset:{j*8192}\nds_read_u16 v{24+j}, v6 offset:{j*8192}")
    a("""v_add_u32 v5, 96, v5
    v_add_u32 v6, 96, v6
    s_add_u32 s30, s30, 1
    s_waitcnt lgkmcnt(0)""")
    for j in range(8): a(f"v_lshl_or_b32 v{8+j}, v{24+j}, 16, v{16+j}")
    a("""buffer_store_dwordx4 v[8:11], v7, s[16:19], s29 offen STF
    buffer_store_dwordx4 v[12:15], v7, s[16:19], s29 offen offset:16 STF
    s_add_u32 s29, s29, 393216
    s_cmp_lt_u32 s30, 5
    s_cbranch_scc1 Lwt3""")
def k1():
    a=Asm()
    stamp(a,0)
    a(f"""s_cmp_ge_u32 s2, 256
    s_cbranch_scc1 Lend1
    s_load_dwordx2 s[8:9], s[0:1], 0
    s_load_dwordx2 s[12:13], s[0:1], 32
    s_load_dwordx2 s[6:7], s[0:1], 64
    v_lshrrev_b32 v2, 6, v0
    v_and_b32 v1, 63, v0
    v_readfirstlane_b32 s3, v2
    s_lshr_b32 s28, s2, 3
    s_and_b32 s20, s2, 3
    s_lshl_b32 s20, s20, 2
    s_and_b32 s29, s28, 3
    s_add_u32 s20, s20, s29
    s_lshr_b32 s21, s28, 2
    s_bfe_u32 s29, s2, 0x10002
    s_mul_i32 s30, s29, 6
    s_lshl_b32 s29, s29, 1
    s_add_u32 s29, s29, 6
    s_cmp_lt_u32 s21, 6
    s_cselect_b32 s29, s30, s29
    s_add_u32 s21, s21, s29
    s_mov_b32 s10, 0x1C0000
    s_mov_b32 s11, 0x20000
    s_mov_b32 s14, {448*3584}
    s_mov_b32 s15, 0x20000
    s_mov_b32 s38, {ST}
    s_mov_b32 s39, {-3*ST}
    s_and_b32 s22, s3, 3
    s_mov_b32 s23, 3584
    s_waitcnt lgkmcnt(0)
    s_cmp_eq_u32 s21, 15
    s_cbranch_scc1 Lwt
    s_cmp_ge_u32 s21, 12
    s_cbranch_scc1 LisF
    s_cmp_ge_u32 s3, 4
    s_cbranch_scc0 LgW
    s_branch Lload
    LisF:
    s_sub_u32 s21, s21, 12
    s_cmp_ge_u32 s3, 4
    s_cbranch_scc0 LgF
    s_mov_b32 s23, 896""")
    tab_srd(a,12,'k1')
    a("Lload:\ns_cmp_ge_u32 s3, 8\ns_cbranch_scc1 Lstat"); loader(a)
    a("Lstat:"); stats(a)
    a("LgW:"); gemm(a,False)
    a("LgF:"); gemm(a,True)
    a("Lwt:"); wtrans(a)
    a("Lfin1:"); flush(a,0,6,3)
    a("Lend1:\ns_endpgm")
    return a.text()
```

```python
from common import *
from k1 import swap23, tr_addr
K2_LDS=131072+9216+16384
def mf16(a,D,A,B,C=None):
    c = f"v[{D}:{D+3}]" if C is None else C
    a(f"v_mfma_f32_16x16x32_bf16 v[{D}:{D+3}], v[{A}:{A+3}], v[{B}:{B+3}], {c}")
XL=131072+9216
def xoff(a):
    a(f"""s_lshl_b32 s24, s2, 13
    s_add_u32 s25, s24, 4096
    s_mov_b32 s26, {hex(f32(2/917504))}
    s_cmp_eq_u32 s2, 224
    s_cselect_b32 s24, 4096, s24
    s_cselect_b32 s27, 0, s2
    s_cmp_eq_u32 s27, 0
    s_cselect_b32 s25, 0x40000000, s25
    s_cselect_b32 s26, {hex(f32(1/917504))}, s26""")
def fft(a):
    srd(a,16,6,YT_OFF,YT_SZ)
    xoff(a)
    a(f"""v_and_b32 v2, 15, v1
    v_lshrrev_b32 v3, 4, v1
    v_lshlrev_b32 v4, 7, v2
    v_and_b32 v5, 7, v1
    v_xor_b32 v5, v5, v3
    v_lshl_add_u32 v5, v5, 4, v4
    v_add_u32 v5, {XL}, v5
    v_lshlrev_b32 v40, 5, v0
    v_add_u32 v40, {XL+8192}, v40
    v_xor_b32 v41, 64, v5""")
    a("""v_cvt_f32_u32 v152, v2
    v_cvt_f32_u32 v153, v3
    s_lshl_b32 s28, s22, 4
    v_cvt_f32_u32 v155, s28
    v_add_f32 v154, v152, v155""")
    def trig4(C,S):
        for j in range(4):
            a(f"v_cos_f32 v{C+j}, v158\nv_sin_f32 v{S+j}, v158")
            if j<3: a("v_add_f32 v158, v158, v156")
    def rot4(C,S,C2,S2):
        a("v_cos_f32 v144, v159\nv_sin_f32 v146, v159\ns_nop 0")
        for j in (0,2):
            a(f"v_pk_mul_f32 v[{C2+j}:{C2+j+1}], v[{C+j}:{C+j+1}], v[144:145] op_sel_hi:[1,0]")
            a(f"v_pk_mul_f32 v[{S2+j}:{S2+j+1}], v[{S+j}:{S+j+1}], v[144:145] op_sel_hi:[1,0]")
        for j in (0,2):
            a(f"v_pk_fma_f32 v[{C2+j}:{C2+j+1}], v[{S+j}:{S+j+1}], v[146:147], v[{C2+j}:{C2+j+1}] op_sel_hi:[1,0,1] neg_lo:[1,0,0] neg_hi:[1,0,0]")
            a(f"v_pk_fma_f32 v[{S2+j}:{S2+j+1}], v[{C+j}:{C+j+1}], v[146:147], v[{S2+j}:{S2+j+1}] op_sel_hi:[1,0,1]")
    a(f"""s_mov_b32 s29, 0x80008000
    s_brev_b32 s30, 1
    v_and_b32 v148, 1, v1
    v_mul_lo_u32 v148, v148, s29
    v_mul_f32 v156, {hex(f32(1/64))}, v154
    v_mul_f32 v157, {hex(f32(8.0))}, v153
    v_mul_f32 v158, v156, v157
    v_mul_f32 v159, 4.0, v156""")
    trig4(160,164); rot4(160,164,128,132)
    for j in range(2):
        a(f"v_cvt_pk_bf16_f32 v{48+j}, v{160+2*j}, v{161+2*j}\nv_cvt_pk_bf16_f32 v{56+j}, v{164+2*j}, v{165+2*j}")
        a(f"v_cvt_pk_bf16_f32 v{50+j}, v{128+2*j}, v{129+2*j}\nv_cvt_pk_bf16_f32 v{58+j}, v{132+2*j}, v{133+2*j}")
    for j in range(4): a(f"v_xor_b32 v{52+j}, v148, v{48+j}\nv_xor_b32 v{60+j}, v148, v{56+j}")
    for j in range(8): a(f"v_xor_b32 v{64+j}, s29, v{56+j}")
    a(f"v_mul_f32 v157, 4.0, v153\nv_mul_f32 v156, {hex(f32(1/2048))}, v154\nv_mul_f32 v158, v156, v157\nv_mul_f32 v159, {hex(f32(16.0))}, v156")
    trig4(96,104); rot4(96,104,100,108)
    a(f"v_mul_f32 v156, {hex(f32(1/32))}, v152\nv_mul_f32 v158, v156, v157")
    trig4(160,164)
    a("s_nop 0")
    for j in range(2): a(f"v_cvt_pk_bf16_f32 v{72+j}, v{160+2*j}, v{161+2*j}\nv_cvt_pk_bf16_f32 v{80+j}, v{164+2*j}, v{165+2*j}")
    for j in range(2): a(f"v_xor_b32 v{74+j}, v148, v{72+j}\nv_xor_b32 v{82+j}, v148, v{80+j}\nv_xor_b32 v{88+j}, s29, v{80+j}")
    for j in range(2): a(f"v_xor_b32 v{90+j}, s29, v{82+j}")
    for j in range(4): a(f"v_xor_b32 v{76+j}, s30, v{72+j}\nv_xor_b32 v{84+j}, s30, v{80+j}\nv_xor_b32 v{92+j}, s30, v{88+j}")
    stamp(a,1)
    a("s_barrier")
    a(f"v_add_f32 v157, v157, v155\nv_mul_f32 v156, {hex(f32(1/2048))}, v152\nv_mul_f32 v158, v156, v157")
    trig4(112,120)
    a("s_nop 0")
    for r in (112,114,120,122): a(f"v_pk_mul_f32 v[{r}:{r+1}], v[{r}:{r+1}], s[26:27] op_sel_hi:[1,0]")
    a(f"v_add_f32 v156, {hex(f32(16/2048))}, v156\nv_mul_f32 v158, v156, v157")
    trig4(116,124)
    a("s_nop 0")
    for r in (116,118,124,126): a(f"v_pk_mul_f32 v[{r}:{r+1}], v[{r}:{r+1}], s[26:27] op_sel_hi:[1,0]")
    a("""v_mul_u32_u24 v7, 144, v2
    v_add_u32 v7, 131072, v7
    s_lshl_b32 s28, s22, 5
    v_lshl_add_u32 v6, v3, 3, v7
    v_add_u32 v6, s28, v6
    v_lshl_add_u32 v7, v3, 4, v7
    v_lshl_add_u32 v4, v3, 3, v4
    v_add_u32 v4, s28, v4""")
    DR,DI=128,136
    a("s_barrier")
    stamp(a,2)
    for ks in range(2):
        for blk in range(2):
            a(f"ds_read_b128 v[{8+blk*8+ks*4}:{11+blk*8+ks*4}], v{41 if ks else 5} offset:{blk*2048}")
            a(f"ds_read_b128 v[{24+blk*8+ks*4}:{27+blk*8+ks*4}], v{41 if ks else 5} offset:{blk*2048+4096}")
    a("ds_read_b128 v[44:47], v40 offset:16\nds_read_b128 v[40:43], v40\ns_waitcnt lgkmcnt(2)")
    a("s_cmp_lt_u32 s25, 0x40000000\ns_cbranch_scc1 Lhasim")
    for r in range(24,40): a(f"v_mov_b32 v{r}, 0")
    a("s_nop 1\nLhasim:")
    for ks in range(2):
        for blk in range(2):
            XR=8+blk*8+ks*4; XI=24+blk*8+ks*4
            mf16(a,DR+4*blk,XR,48+4*ks,'0' if ks==0 else None); mf16(a,DI+4*blk,XI,48+4*ks,'0' if ks==0 else None)
        for blk in range(2):
            XR=8+blk*8+ks*4; XI=24+blk*8+ks*4
            mf16(a,DR+4*blk,XI,56+4*ks); mf16(a,DI+4*blk,XR,64+4*ks)
    def cmul(C,S,sgn):
        a("s_nop 6")
        n1,n2=('-','') if sgn>0 else ('','-')
        for j in range(0,8,2):
            a(f"v_pk_mul_f32 v[{152+j}:{153+j}], v[{DR+j}:{DR+j+1}], v[{C+j}:{C+j+1}]")
            a(f"v_pk_mul_f32 v[{160+j}:{161+j}], v[{DI+j}:{DI+j+1}], v[{C+j}:{C+j+1}]")
        for j in range(0,8,2):
            m1=" neg_lo:[1,0,0] neg_hi:[1,0,0]" if sgn>0 else ""
            m2=" neg_lo:[1,0,0] neg_hi:[1,0,0]" if sgn<0 else ""
            a(f"v_pk_fma_f32 v[{152+j}:{153+j}], v[{DI+j}:{DI+j+1}], v[{S+j}:{S+j+1}], v[{152+j}:{153+j}]{m1}")
            a(f"v_pk_fma_f32 v[{160+j}:{161+j}], v[{DR+j}:{DR+j+1}], v[{S+j}:{S+j+1}], v[{160+j}:{161+j}]{m2}")
        for j in range(4):
            a(f"v_cvt_pk_bf16_f32 v{144+j}, v{152+2*j}, v{153+2*j}\nv_cvt_pk_bf16_f32 v{148+j}, v{160+2*j}, v{161+2*j}")
        a("s_nop 1")
    cmul(96,104,-1)
    for blk in range(2): mf16(a,DR+4*blk,72+4*blk,144,'0'); mf16(a,DI+4*blk,72+4*blk,148,'0')
    for blk in range(2): mf16(a,DR+4*blk,80+4*blk,148); mf16(a,DI+4*blk,88+4*blk,144)
    a("s_waitcnt lgkmcnt(0)\ns_barrier")
    for j in range(8): a(f"v_lshlrev_b32 v{8+j}, 16, v{40+j}\nv_and_b32 v{16+j}, 0xffff0000, v{40+j}")
    cmul(8,16,+1)
    for blk in range(2): mf16(a,DR+4*blk,144,72+4*blk,'0'); mf16(a,DI+4*blk,148,72+4*blk,'0')
    for blk in range(2): mf16(a,DR+4*blk,148,88+4*blk); mf16(a,DI+4*blk,144,80+4*blk)
    cmul(112,120,+1)
    for blk in range(2):
        a(f"ds_write_b64 v6, v[{144+2*blk}:{145+2*blk}] offset:{blk*2304}\nds_write_b64 v6, v[{148+2*blk}:{149+2*blk}] offset:{4608+blk*2304}")
    stamp(a,3)
    a("s_waitcnt lgkmcnt(0)\ns_barrier")
    stamp(a,4)
    for ks in range(2):
        for blk in range(2):
            a(f"ds_read_b128 v[{8+blk*8+ks*4}:{11+blk*8+ks*4}], v7 offset:{blk*2304+ks*64}")
            a(f"ds_read_b128 v[{24+blk*8+ks*4}:{27+blk*8+ks*4}], v7 offset:{4608+blk*2304+ks*64}")
    for ks in range(2):
        a(f"s_waitcnt lgkmcnt({4-4*ks})")
        for blk in range(2):
            XR=8+blk*8+ks*4; XI=24+blk*8+ks*4
            mf16(a,DR+4*blk,48+4*ks,XR,'0' if ks==0 else None); mf16(a,DI+4*blk,48+4*ks,XI,'0' if ks==0 else None)
        for blk in range(2):
            XR=8+blk*8+ks*4; XI=24+blk*8+ks*4
            mf16(a,DR+4*blk,64+4*ks,XI); mf16(a,DI+4*blk,56+4*ks,XR)
    a("s_nop 6")
    for j in range(4):
        a(f"v_cvt_pk_bf16_f32 v{144+j}, v{DR+2*j}, v{DR+2*j+1}\nv_cvt_pk_bf16_f32 v{148+j}, v{DI+2*j}, v{DI+2*j+1}")
    for blk in range(2):
        a(f"buffer_store_dwordx2 v[{144+2*blk}:{145+2*blk}], v4, s[16:19], s24 offen offset:{blk*2048} STF")
        a(f"buffer_store_dwordx2 v[{148+2*blk}:{149+2*blk}], v4, s[16:19], s25 offen offset:{blk*2048} STF")
def load2(a):
    srd(a,8,6,H_OFF,H_SZ); srd(a,12,4,0,1792*896)
    a("""s_add_u32 s24, s23, s22
    s_mul_i32 s24, s24, 112
    s_mul_i32 s28, s20, 28
    s_add_u32 s24, s24, s28
    s_lshl_b32 s24, s24, 10
    s_mul_i32 s25, s20, 448
    s_lshl_b32 s28, s22, 4
    s_add_u32 s25, s25, s28
    s_mul_i32 s25, s25, 896
    s_lshl_b32 s28, s30, 6
    s_add_u32 s25, s25, s28
    s_add_u32 s27, s25, 192
    s_bitcmp1_b32 s21, 0
    s_cselect_b32 s27, 0x40000000, s27
    s_lshl_b32 s26, s22, 12
    v_lshlrev_b32 v2, 4, v1
    v_lshrrev_b32 v4, 2, v1
    v_mul_u32_u24 v4, 896, v4
    v_and_b32 v5, 3, v1
    v_lshl_add_u32 v4, v5, 4, v4""")
    def dma(ch):
        st=(ch&3)*32768
        a(f"s_add_u32 m0, s26, {st}\ns_add_u32 s28, s24, {ch*4096}")
        for e in range(4): a(f"buffer_load_dwordx4 v2, s[8:11], s28 offen offset:{e*1024} lds")
        for b in range(4):
            src = f"s_add_u32 s28, s25, {ch*64*896+b*64}" if b<3 else f"s_add_u32 s28, s27, {ch*64*896}"
            a(f"s_add_u32 m0, s26, {st+16384+b*1024}\n{src}\nbuffer_load_dwordx4 v4, s[12:15], s28 offen lds")
    dma(0)
    a("s_cmp_ge_u32 s2, 225\ns_cbranch_scc1 Lnox\ns_mov_b32 s36, s24\ns_mov_b32 s37, s25\ns_mov_b32 s38, s26\ns_mov_b32 s39, s27")
    xoff(a); srd(a,16,6,X1_OFF,X1_SZ); srd(a,40,6,WT_OFF,WT_SZ)
    a(f"""v_lshrrev_b32 v6, 3, v1
    v_xor_b32 v6, v6, v1
    v_and_b32 v6, 7, v6
    v_and_b32 v7, 56, v1
    v_add_u32 v6, v6, v7
    v_lshlrev_b32 v6, 4, v6
    s_lshl_b32 s28, s22, 10
    s_add_u32 m0, s28, {XL}
    s_add_u32 s24, s24, s28
    buffer_load_dwordx4 v6, s[16:19], s24 offen lds
    s_add_u32 m0, s28, {XL+4096}
    s_add_u32 s25, s25, s28
    buffer_load_dwordx4 v6, s[16:19], s25 offen lds
    s_lshl_b32 s28, s22, 11
    s_add_u32 m0, s28, {XL+8192}
    s_lshl_b32 s29, s2, 13
    s_add_u32 s28, s28, s29
    buffer_load_dwordx4 v2, s[40:43], s28 offen lds
    buffer_load_dwordx4 v2, s[40:43], s28 offen offset:1024 lds
    s_mov_b32 s24, s36
    s_mov_b32 s25, s37
    s_mov_b32 s26, s38
    s_mov_b32 s27, s39""")
    dma(1); a("s_waitcnt vmcnt(12)\ns_branch Lxd\nLnox:"); dma(1); a("s_waitcnt vmcnt(8)\nLxd:")
    stamp(a,1); a("s_barrier")
    dma(2)
    for i in range(1,7):
        if i<5: dma(i+2)
        a(f"s_waitcnt vmcnt({min(16,8*(6-i))})")
        if i in (0,1,2,3,5): stamp(a,{0:1,1:2,2:3,3:4,5:5}[i])
        a("s_barrier")
    tab_srd(a,12,'k2')
    a("""s_lshr_b32 s28, s2, 3
    s_lshl_b32 s28, s28, 2
    s_add_u32 s28, s28, s22
    s_mul_i32 s28, s28, 3200
    v_and_b32 v2, 31, v1
    v_lshlrev_b32 v2, 7, v2
    buffer_load_dword v3, v2, s[12:15], s28 offen
    s_waitcnt vmcnt(0)
    s_branch Lfin2""")
def gemm2(a):
    srd(a,16,6,P_OFF,P_SZ)
    a("""s_and_b32 s32, s22, 1
    s_lshr_b32 s33, s22, 1
    v_lshlrev_b32 v2, 4, v1
    s_lshl_b32 s28, s32, 13
    v_add_u32 v8, s28, v2
    v_add_u32 v9, 65536, v8""")
    tr_addr(a,10,True)
    a("""s_lshl_b32 s28, s33, 11
    s_add_u32 s28, s28, 16384
    v_add_u32 v10, s28, v10
    v_add_u32 v11, 65536, v10
    s_lshl_b32 s28, s20, 6
    s_add_u32 s28, s28, s23
    s_lshl_b32 s29, s32, 1
    s_add_u32 s28, s28, s29
    s_mul_i32 s28, s28, 28
    s_lshl_b32 s29, s33, 1
    s_add_u32 s29, s29, s30
    s_lshl_b32 s29, s29, 1
    s_add_u32 s28, s28, s29
    s_lshl_b32 s28, s28, 10
    s_add_u32 s29, s28, 28672
    s_and_b32 s31, s33, s21""")
    def reads(s):
        R=24+16*(s&1); st=(s>>2)&3; hi=st>>1; o=(st&1)*32768; t=s&3; g=[]
        for j in range(2):
            g.append(f"ds_read_b128 v[{R+4*j}:{R+4*j+3}], v{8+hi} offset:{o+j*4096+t*1024}")
            g.append(f"ds_read_b64_tr_b16 v[{R+8+4*j}:{R+9+4*j}], v{10+hi} offset:{o+t*4096+j*1024}")
            g.append(f"ds_read_b64_tr_b16 v[{R+10+4*j}:{R+11+4*j}], v{10+hi} offset:{o+t*4096+j*1024+256}")
        return g
    stamp(a,1)
    a("s_barrier")
    stamp(a,2)
    if DIAG: a("s_memtime s[44:45]\ns_waitcnt lgkmcnt(0)")
    for x in reads(0): a(x)
    for s in range(28):
        R=24+16*(s&1); fill=[]
        a("s_waitcnt lgkmcnt(0)")
        if (s&3)==3 and s<27: a("s_barrier")
        if s<27: fill=reads(s+1)
        k=0
        for q,(i,j) in enumerate(((0,0),(1,0),(1,1),(0,1))):
            D=64+32*i+16*j
            a(f"v_mfma_f32_32x32x16_bf16 v[{D}:{D+15}], v[{R+8+4*j}:{R+11+4*j}], v[{R+4*i}:{R+4*i+3}], "+("0" if s==0 else f"v[{D}:{D+15}]"))
            e=min(len(fill),3*(q+1))
            while k<e: a(fill[k]); k+=1
    stamp(a,3)
    if DIAG: a("s_memtime s[46:47]\ns_waitcnt lgkmcnt(0)\ns_sub_u32 s46, s46, s44\ns_mul_i32 s46, s46, 6554\ns_lshr_b32 s46, s46, 16\ns_add_u32 s68, s60, s46")
    a("s_nop 7")
    for q,(i,j) in enumerate(((0,0),(1,0),(1,1),(0,1))):
        D=64+32*i+16*j
        if q==2: a("s_bitcmp1_b32 s31, 0\ns_cbranch_scc1 Lfin2")
        for x in range(8): a(f"v_cvt_pk_bf16_f32 v{D+x}, v{D+2*x}, v{D+2*x+1}")
        a(f"buffer_store_dwordx4 v[{D}:{D+3}], v2, s[16:19], s{28+i} offen offset:{j*2048} STP")
        a(f"buffer_store_dwordx4 v[{D+4}:{D+7}], v2, s[16:19], s{28+i} offen offset:{j*2048+1024} STP")
    a("s_branch Lfin2")
def k2():
    a=Asm()
    stamp(a,0)
    a("""s_cmp_ge_u32 s2, 256
    s_cbranch_scc1 Lend2
    s_load_dwordx2 s[4:5], s[0:1], 40
    s_load_dwordx2 s[6:7], s[0:1], 64
    v_lshrrev_b32 v2, 6, v0
    v_and_b32 v1, 63, v0
    v_and_b32 v0, 255, v0
    v_readfirstlane_b32 s3, v2
    s_bfe_u32 s20, s2, 0x10002
    s_lshl_b32 s20, s20, 1
    s_bfe_u32 s28, s2, 0x10005
    s_add_u32 s20, s20, s28
    s_lshr_b32 s21, s2, 6
    s_and_b32 s28, s2, 3
    s_lshl_b32 s28, s28, 2
    s_bfe_u32 s29, s2, 0x20003
    s_add_u32 s28, s28, s29
    s_lshl_b32 s23, s28, 2
    s_mul_i32 s30, s21, 7
    s_add_u32 s30, s30, 1
    s_lshr_b32 s30, s30, 1
    s_and_b32 s22, s3, 3
    s_cmp_lt_u32 s3, 4
    s_waitcnt lgkmcnt(0)
    s_cbranch_scc1 Lg2
    s_cmp_lt_u32 s3, 8
    s_cbranch_scc1 Ll2
    s_cmp_ge_u32 s2, 225
    s_cbranch_scc1 Lend2""")
    fft(a)
    a("s_branch Lfin2")
    a("Ll2:"); load2(a)
    a("Lg2:"); gemm2(a)
    a("Lfin2:"); flush(a,1,6,3)
    a("Lend2:\ns_endpgm")
    return a.text()
```

```python
from common import *
from k1 import swap23
K3_LDS=114688; FB=57344
def k3():
    a=Asm()
    stamp(a,0)
    a("""s_cmp_ge_u32 s2, 224
    s_cbranch_scc1 Lend3
    s_load_dwordx2 s[4:5], s[0:1], 0
    s_load_dwordx2 s[6:7], s[0:1], 64
    s_load_dwordx2 s[20:21], s[0:1], 48
    v_lshrrev_b32 v2, 6, v0
    v_and_b32 v1, 63, v0
    v_readfirstlane_b32 s3, v2
    s_lshr_b32 s28, s2, 3
    s_and_b32 s30, s2, 3
    s_lshl_b32 s30, s30, 3
    s_and_b32 s29, s2, 4
    s_add_u32 s30, s30, s29
    s_and_b32 s29, s28, 3
    s_add_u32 s30, s30, s29
    s_lshr_b32 s31, s28, 2
    s_and_b32 s32, s3, 1
    s_lshr_b32 s33, s3, 1""")
    tab_srd(a,12,'k3')
    a("""s_lshl_b32 s34, s30, 1
    s_add_u32 s34, s34, s32
    s_mul_i32 s34, s34, 28
    s_lshl_b32 s28, s31, 1
    s_add_u32 s28, s28, s33
    s_lshl_b32 s29, s28, 1
    s_add_u32 s34, s34, s29
    s_lshl_b32 s34, s34, 10
    s_lshl_b32 s35, s28, 6
    s_lshl_b32 s28, s32, 10
    s_add_u32 s28, s28, s30
    s_mul_i32 s28, s28, 896
    s_add_u32 s35, s35, s28
    v_lshlrev_b32 v2, 4, v1
    v_and_b32 v5, 31, v1
    v_lshrrev_b32 v6, 5, v1
    v_mul_u32_u24 v3, 28672, v5
    v_lshl_add_u32 v3, v6, 4, v3
    v_lshrrev_b32 v8, 3, v1
    v_and_b32 v9, 7, v1
    v_lshrrev_b32 v10, 4, v1
    v_xor_b32 v11, v9, v10
    v_mul_u32_u24 v12, 896, v8
    v_lshl_add_u32 v12, v11, 4, v12
    v_xor_b32 v13, 64, v12
    v_and_b32 v10, 1, v10
    v_lshlrev_b32 v10, 2, v10
    v_xor_b32 v9, v9, v10
    v_lshlrev_b32 v14, 12, v8
    v_lshl_add_u32 v14, v9, 4, v14
    s_lshl_b32 s36, s3, 16
    s_lshl_b32 s28, s30, 7
    s_add_u32 s36, s36, s28
    s_lshl_b32 s37, s31, 2
    s_add_u32 s37, s37, s3
    s_mul_i32 s37, s37, 14336
    s_lshl_b32 s38, s3, 11
    s_waitcnt lgkmcnt(0)""")
    srd(a,8,6,P_OFF,P_SZ); srd(a,16,6,YT_OFF,YT_SZ); srd(a,24,4,0,0x1C0000)
    a("s_mov_b32 s22, 0x1C0000\ns_mov_b32 s23, 0x20000")
    for ks in range(4):
        for u in range(2): a(f"buffer_load_dwordx4 v[{32+8*ks+4*u}:{35+8*ks+4*u}], v2, s[8:11], s34 offen offset:{u*1024}")
        if ks<3: a(f"s_add_u32 s34, s34, {64*28*1024}")
    for u in range(2): a(f"buffer_load_dwordx4 v[{64+4*u}:{67+4*u}], v3, s[24:27], s35 offen offset:{u*32}")
    a("s_mov_b32 s39, 0\nLdma3:")
    a(f"""s_add_u32 m0, s38, 0
    s_add_u32 s28, s36, 32768
    buffer_load_dwordx4 v14, s[16:19], s36 offen lds
    s_add_u32 m0, s38, 1024
    s_add_u32 s36, s36, 262144
    buffer_load_dwordx4 v14, s[16:19], s28 offen lds
    s_add_u32 m0, s38, {FB}
    s_add_u32 s28, s37, 7168
    buffer_load_dwordx4 v12, s[12:15], s37 offen lds
    s_add_u32 m0, s38, {FB+1024}
    s_add_u32 s37, s37, 128
    buffer_load_dwordx4 v13, s[12:15], s28 offen lds
    s_add_u32 s38, s38, 8192
    s_add_u32 s39, s39, 1
    s_cmp_lt_u32 s39, 7
    s_cbranch_scc1 Ldma3""")
    swap23(a,5,5,7)
    a(f"""s_lshl_b32 s28, s33, 12
    s_add_u32 s28, s28, {FB}
    v_bfe_u32 v7, v5, 1, 3
    v_lshlrev_b32 v5, 7, v5
    v_add_u32 v5, s28, v5""")
    for e in range(4): a(f"v_add_u32 v8, {2*e}, v6\nv_xor_b32 v8, v8, v7\nv_lshl_add_u32 v{16+e}, v8, 4, v5")
    a("""v_bfe_u32 v8, v1, 2, 2
    v_lshl_add_u32 v9, v6, 3, v8
    v_lshlrev_b32 v9, 7, v9
    v_lshrrev_b32 v8, 1, v8
    v_xor_b32 v8, s32, v8
    v_lshl_add_u32 v9, v8, 6, v9
    v_bfe_u32 v8, v1, 4, 1
    v_lshl_add_u32 v9, v8, 5, v9
    v_and_b32 v8, 3, v1
    v_lshl_add_u32 v20, v8, 3, v9""")
    a(f"s_mov_b32 s28, 0xffff0000\ns_mov_b32 s29, {hex(f32(-1.4426950408889634))}")
    stamp(a,1); a("s_waitcnt vmcnt(30)"); stamp(a,2)
    for j in range(8):
        for ks in range(4): a(f"v_lshlrev_b32 v{96+2*ks}, 16, v{32+8*ks+j}\nv_and_b32 v{97+2*ks}, s28, v{32+8*ks+j}")
        G=80+2*j
        a(f"""v_pk_add_f32 v[96:97], v[96:97], v[98:99]
        v_pk_add_f32 v[100:101], v[100:101], v[102:103]
        v_pk_add_f32 v[96:97], v[96:97], v[100:101]
        v_cvt_pk_bf16_f32 v98, v96, v97
        v_lshlrev_b32 v96, 16, v98
        v_and_b32 v97, s28, v98
        v_mul_f32 v98, s29, v96
        v_mul_f32 v99, s29, v97
        v_exp_f32 v98, v98
        v_exp_f32 v99, v99
        s_nop 0
        v_pk_add_f32 v[98:99], v[98:99], 1.0 op_sel_hi:[1,0]
        v_rcp_f32 v98, v98
        v_rcp_f32 v99, v99
        s_nop 0
        v_pk_mul_f32 v[96:97], v[96:97], v[98:99]
        v_cvt_pk_bf16_f32 v98, v96, v97
        v_lshlrev_b32 v{G}, 16, v98
        v_and_b32 v{G+1}, s28, v98""")
    def reads(s):
        b=s%3; F=32+8*b; Y=36+8*b
        return [f"ds_read_b128 v[{F}:{F+3}], v{16+(s&3)} offset:{(s>>2)*8192}",
                f"ds_read_b64_tr_b16 v[{Y}:{Y+1}], v20 offset:{s*2048}",
                f"ds_read_b64_tr_b16 v[{Y+2}:{Y+3}], v20 offset:{s*2048+512}"]
    def need(s):
        if s<28:
            if s%4==0: a(f"s_waitcnt vmcnt({(6-s//4)*4})\ns_barrier")
            for x in reads(s): a(x)
    stamp(a,3); a("s_waitcnt vmcnt(24)\ns_barrier"); stamp(a,4)
    need(0); need(1)
    for s in range(28):
        b=s%3; F=32+8*b; Y=36+8*b
        need(s+2)
        a(f"s_waitcnt lgkmcnt({3*min(2,27-s)})")
        a(f"v_mfma_f32_32x32x16_bf16 v[112:127], v[{F}:{F+3}], v[{Y}:{Y+3}], "+("0" if s==0 else "v[112:127]"))
    stamp(a,5)
    for j in range(8): a(f"v_lshlrev_b32 v{96+2*j}, 16, v{64+j}\nv_and_b32 v{97+2*j}, s28, v{64+j}")
    for j in range(8): a(f"v_cvt_pk_bf16_f32 v{32+j}, v{112+2*j}, v{113+2*j}")
    for j in range(8): a(f"v_lshlrev_b32 v{112+2*j}, 16, v{32+j}\nv_and_b32 v{113+2*j}, s28, v{32+j}")
    for j in range(8): a(f"v_pk_mul_f32 v[{112+2*j}:{113+2*j}], v[{112+2*j}:{113+2*j}], v[{80+2*j}:{81+2*j}]")
    for j in range(8): a(f"v_cvt_pk_bf16_f32 v{32+j}, v{112+2*j}, v{113+2*j}")
    for j in range(8): a(f"v_lshlrev_b32 v{112+2*j}, 16, v{32+j}\nv_and_b32 v{113+2*j}, s28, v{32+j}")
    for j in range(8): a(f"v_pk_add_f32 v[{112+2*j}:{113+2*j}], v[{112+2*j}:{113+2*j}], v[{96+2*j}:{97+2*j}]")
    for j in range(8): a(f"v_cvt_pk_bf16_f32 v{32+j}, v{112+2*j}, v{113+2*j}")
    for u in range(2): a(f"buffer_store_dwordx4 v[{32+4*u}:{35+4*u}], v3, s[20:23], s35 offen offset:{u*32}")
    flush(a,2,6,3)
    a("Lend3:\ns_endpgm")
    return a.text()
```

```python
import sys
from common import *
import k1,k2,k3
out=sys.argv[1] if len(sys.argv)>1 else 'recurrent_scan__spectral_gfnet__dense_activation_relu__prompt.s'
stf=sys.argv[2] if len(sys.argv)>2 else ''
hdr=open('recurrent_scan__spectral_gfnet__dense_activation_relu__prompt.s.ref').read().split('; Override launch')[0]
s=hdr
s+=f"; @launch kernel=k1_kernel grid=(256,1,1) block=(768,1,1) lds={k1.K1_LDS}\n"
s+=f"; @launch kernel=k2_kernel grid=(256,1,1) block=(768,1,1) lds={k2.K2_LDS}\n"
s+=f"; @launch kernel=k3_kernel grid=(224,1,1) block=(512,1,1) lds={k3.K3_LDS}\n"
s+='.amdgcn_target "amdgcn-amd-amdhsa--gfx950"\n.text\n'
s+=head('k1_kernel')+k1.k1()+head('k2_kernel')+k2.k2()+head('k3_kernel')+k3.k3()
s=s.replace(' STF',(' '+stf) if stf else '')
sth=sys.argv[3] if len(sys.argv)>3 else ''
s=s.replace(' STH',(' '+sth) if sth else '')
s=s.replace(' STP',(' '+sys.argv[4]) if len(sys.argv)>4 and sys.argv[4] else '')
s+=ftable()
s+='.section .rodata,"a"\n'+desc('k1_kernel',160)+desc('k2_kernel',168)+desc('k3_kernel',128)
open(out,'w').write(s)
```

```python
from common import *
from k1 import swap23, tr_addr
K2_LDS=131072+9216+16384
def mf16(a,D,A,B,C=None):
    c = f"v[{D}:{D+3}]" if C is None else C
    a(f"v_mfma_f32_16x16x32_bf16 v[{D}:{D+3}], v[{A}:{A+3}], v[{B}:{B+3}], {c}")
XL=131072+9216
def xoff(a):
    a(f"""s_lshl_b32 s24, s2, 13
    s_add_u32 s25, s24, 4096
    s_mov_b32 s26, {hex(f32(2/917504))}
    s_cmp_eq_u32 s2, 224
    s_cselect_b32 s24, 4096, s24
    s_cselect_b32 s27, 0, s2
    s_cmp_eq_u32 s27, 0
    s_cselect_b32 s25, 0x40000000, s25
    s_cselect_b32 s26, {hex(f32(1/917504))}, s26""")
def fft(a):
    srd(a,16,6,YT_OFF,YT_SZ)
    xoff(a)
    a(f"""v_and_b32 v2, 15, v1
    v_lshrrev_b32 v3, 4, v1
    v_lshlrev_b32 v4, 7, v2
    v_and_b32 v5, 7, v1
    v_xor_b32 v5, v5, v3
    v_lshl_add_u32 v5, v5, 4, v4
    v_add_u32 v5, {XL}, v5
    v_lshlrev_b32 v40, 5, v0
    v_add_u32 v40, {XL+8192}, v40
    v_xor_b32 v41, 64, v5""")
    a("""v_cvt_f32_u32 v152, v2
    v_cvt_f32_u32 v153, v3
    s_lshl_b32 s28, s22, 4
    v_cvt_f32_u32 v155, s28
    v_add_f32 v154, v152, v155""")
    def trig4(C,S):
        for j in range(4):
            a(f"v_cos_f32 v{C+j}, v158\nv_sin_f32 v{S+j}, v158")
            if j<3: a("v_add_f32 v158, v158, v156")
    def rot4(C,S,C2,S2):
        a("v_cos_f32 v144, v159\nv_sin_f32 v146, v159\ns_nop 0")
        for j in (0,2):
            a(f"v_pk_mul_f32 v[{C2+j}:{C2+j+1}], v[{C+j}:{C+j+1}], v[144:145] op_sel_hi:[1,0]")
            a(f"v_pk_mul_f32 v[{S2+j}:{S2+j+1}], v[{S+j}:{S+j+1}], v[144:145] op_sel_hi:[1,0]")
        for j in (0,2):
            a(f"v_pk_fma_f32 v[{C2+j}:{C2+j+1}], v[{S+j}:{S+j+1}], v[146:147], v[{C2+j}:{C2+j+1}] op_sel_hi:[1,0,1] neg_lo:[1,0,0] neg_hi:[1,0,0]")
            a(f"v_pk_fma_f32 v[{S2+j}:{S2+j+1}], v[{C+j}:{C+j+1}], v[146:147], v[{S2+j}:{S2+j+1}] op_sel_hi:[1,0,1]")
    a(f"""s_mov_b32 s29, 0x80008000
    s_brev_b32 s30, 1
    v_and_b32 v148, 1, v1
    v_mul_lo_u32 v148, v148, s29
    v_mul_f32 v156, {hex(f32(1/64))}, v154
    v_mul_f32 v157, {hex(f32(8.0))}, v153
    v_mul_f32 v158, v156, v157
    v_mul_f32 v159, 4.0, v156""")
    trig4(160,164); rot4(160,164,128,132)
    for j in range(2):
        a(f"v_cvt_pk_bf16_f32 v{48+j}, v{160+2*j}, v{161+2*j}\nv_cvt_pk_bf16_f32 v{56+j}, v{164+2*j}, v{165+2*j}")
        a(f"v_cvt_pk_bf16_f32 v{50+j}, v{128+2*j}, v{129+2*j}\nv_cvt_pk_bf16_f32 v{58+j}, v{132+2*j}, v{133+2*j}")
    for j in range(4): a(f"v_xor_b32 v{52+j}, v148, v{48+j}\nv_xor_b32 v{60+j}, v148, v{56+j}")
    for j in range(8): a(f"v_xor_b32 v{64+j}, s29, v{56+j}")
    a(f"v_mul_f32 v157, 4.0, v153\nv_mul_f32 v156, {hex(f32(1/2048))}, v154\nv_mul_f32 v158, v156, v157\nv_mul_f32 v159, {hex(f32(16.0))}, v156")
    trig4(96,104); rot4(96,104,100,108)
    a(f"v_mul_f32 v156, {hex(f32(1/32))}, v152\nv_mul_f32 v158, v156, v157")
    trig4(160,164)
    a("s_nop 0")
    for j in range(2): a(f"v_cvt_pk_bf16_f32 v{72+j}, v{160+2*j}, v{161+2*j}\nv_cvt_pk_bf16_f32 v{80+j}, v{164+2*j}, v{165+2*j}")
    for j in range(2): a(f"v_xor_b32 v{74+j}, v148, v{72+j}\nv_xor_b32 v{82+j}, v148, v{80+j}\nv_xor_b32 v{88+j}, s29, v{80+j}")
    for j in range(2): a(f"v_xor_b32 v{90+j}, s29, v{82+j}")
    for j in range(4): a(f"v_xor_b32 v{76+j}, s30, v{72+j}\nv_xor_b32 v{84+j}, s30, v{80+j}\nv_xor_b32 v{92+j}, s30, v{88+j}")
    stamp(a,1)
    a("s_barrier")
    a(f"v_add_f32 v157, v157, v155\nv_mul_f32 v156, {hex(f32(1/2048))}, v152\nv_mul_f32 v158, v156, v157")
    trig4(112,120)
    a("s_nop 0")
    for r in (112,114,120,122): a(f"v_pk_mul_f32 v[{r}:{r+1}], v[{r}:{r+1}], s[26:27] op_sel_hi:[1,0]")
    a(f"v_add_f32 v156, {hex(f32(16/2048))}, v156\nv_mul_f32 v158, v156, v157")
    trig4(116,124)
    a("s_nop 0")
    for r in (116,118,124,126): a(f"v_pk_mul_f32 v[{r}:{r+1}], v[{r}:{r+1}], s[26:27] op_sel_hi:[1,0]")
    a("""v_mul_u32_u24 v7, 144, v2
    v_add_u32 v7, 131072, v7
    s_lshl_b32 s28, s22, 5
    v_lshl_add_u32 v6, v3, 3, v7
    v_add_u32 v6, s28, v6
    v_lshl_add_u32 v7, v3, 4, v7
    v_lshl_add_u32 v4, v3, 3, v4
    v_add_u32 v4, s28, v4""")
    DR,DI=128,136
    a("s_barrier")
    stamp(a,2)
    for ks in range(2):
        for blk in range(2):
            a(f"ds_read_b128 v[{8+blk*8+ks*4}:{11+blk*8+ks*4}], v{41 if ks else 5} offset:{blk*2048}")
            a(f"ds_read_b128 v[{24+blk*8+ks*4}:{27+blk*8+ks*4}], v{41 if ks else 5} offset:{blk*2048+4096}")
    a("ds_read_b128 v[44:47], v40 offset:16\nds_read_b128 v[40:43], v40\ns_waitcnt lgkmcnt(2)")
    a("s_cmp_lt_u32 s25, 0x40000000\ns_cbranch_scc1 Lhasim")
    for r in range(24,40): a(f"v_mov_b32 v{r}, 0")
    a("s_nop 1\nLhasim:")
    for ks in range(2):
        for blk in range(2):
            XR=8+blk*8+ks*4; XI=24+blk*8+ks*4
            mf16(a,DR+4*blk,XR,48+4*ks,'0' if ks==0 else None); mf16(a,DI+4*blk,XI,48+4*ks,'0' if ks==0 else None)
        for blk in range(2):
            XR=8+blk*8+ks*4; XI=24+blk*8+ks*4
            mf16(a,DR+4*blk,XI,56+4*ks); mf16(a,DI+4*blk,XR,64+4*ks)
    def cmul(C,S,sgn):
        a("s_nop 6")
        n1,n2=('-','') if sgn>0 else ('','-')
        for j in range(0,8,2):
            a(f"v_pk_mul_f32 v[{152+j}:{153+j}], v[{DR+j}:{DR+j+1}], v[{C+j}:{C+j+1}]")
            a(f"v_pk_mul_f32 v[{160+j}:{161+j}], v[{DI+j}:{DI+j+1}], v[{C+j}:{C+j+1}]")
        for j in range(0,8,2):
            m1=" neg_lo:[1,0,0] neg_hi:[1,0,0]" if sgn>0 else ""
            m2=" neg_lo:[1,0,0] neg_hi:[1,0,0]" if sgn<0 else ""
            a(f"v_pk_fma_f32 v[{152+j}:{153+j}], v[{DI+j}:{DI+j+1}], v[{S+j}:{S+j+1}], v[{152+j}:{153+j}]{m1}")
            a(f"v_pk_fma_f32 v[{160+j}:{161+j}], v[{DR+j}:{DR+j+1}], v[{S+j}:{S+j+1}], v[{160+j}:{161+j}]{m2}")
        for j in range(4):
            a(f"v_cvt_pk_bf16_f32 v{144+j}, v{152+2*j}, v{153+2*j}\nv_cvt_pk_bf16_f32 v{148+j}, v{160+2*j}, v{161+2*j}")
        a("s_nop 1")
    cmul(96,104,-1)
    for blk in range(2): mf16(a,DR+4*blk,72+4*blk,144,'0'); mf16(a,DI+4*blk,72+4*blk,148,'0')
    for blk in range(2): mf16(a,DR+4*blk,80+4*blk,148); mf16(a,DI+4*blk,88+4*blk,144)
    a("s_waitcnt lgkmcnt(0)\ns_barrier")
    for j in range(8): a(f"v_lshlrev_b32 v{8+j}, 16, v{40+j}\nv_and_b32 v{16+j}, 0xffff0000, v{40+j}")
    cmul(8,16,+1)
    for blk in range(2): mf16(a,DR+4*blk,144,72+4*blk,'0'); mf16(a,DI+4*blk,148,72+4*blk,'0')
    for blk in range(2): mf16(a,DR+4*blk,148,88+4*blk); mf16(a,DI+4*blk,144,80+4*blk)
    cmul(112,120,+1)
    for blk in range(2):
        a(f"ds_write_b64 v6, v[{144+2*blk}:{145+2*blk}] offset:{blk*2304}\nds_write_b64 v6, v[{148+2*blk}:{149+2*blk}] offset:{4608+blk*2304}")
    stamp(a,3)
    a("s_waitcnt lgkmcnt(0)\ns_barrier")
    stamp(a,4)
    for ks in range(2):
        for blk in range(2):
            a(f"ds_read_b128 v[{8+blk*8+ks*4}:{11+blk*8+ks*4}], v7 offset:{blk*2304+ks*64}")
            a(f"ds_read_b128 v[{24+blk*8+ks*4}:{27+blk*8+ks*4}], v7 offset:{4608+blk*2304+ks*64}")
    for ks in range(2):
        a(f"s_waitcnt lgkmcnt({4-4*ks})")
        for blk in range(2):
            XR=8+blk*8+ks*4; XI=24+blk*8+ks*4
            mf16(a,DR+4*blk,48+4*ks,XR,'0' if ks==0 else None); mf16(a,DI+4*blk,48+4*ks,XI,'0' if ks==0 else None)
        for blk in range(2):
            XR=8+blk*8+ks*4; XI=24+blk*8+ks*4
            mf16(a,DR+4*blk,64+4*ks,XI); mf16(a,DI+4*blk,56+4*ks,XR)
    a("s_nop 6")
    for j in range(4):
        a(f"v_cvt_pk_bf16_f32 v{144+j}, v{DR+2*j}, v{DR+2*j+1}\nv_cvt_pk_bf16_f32 v{148+j}, v{DI+2*j}, v{DI+2*j+1}")
    for blk in range(2):
        a(f"buffer_store_dwordx2 v[{144+2*blk}:{145+2*blk}], v4, s[16:19], s24 offen offset:{blk*2048} STY")
        a(f"buffer_store_dwordx2 v[{148+2*blk}:{149+2*blk}], v4, s[16:19], s25 offen offset:{blk*2048} STY")
def load2(a):
    srd(a,8,6,H_OFF,H_SZ); srd(a,12,4,0,1792*896)
    a("""s_add_u32 s24, s23, s22
    s_mul_i32 s24, s24, 112
    s_mul_i32 s28, s20, 28
    s_add_u32 s24, s24, s28
    s_lshl_b32 s24, s24, 10
    s_mul_i32 s25, s20, 448
    s_lshl_b32 s28, s22, 4
    s_add_u32 s25, s25, s28
    s_mul_i32 s25, s25, 896
    s_lshl_b32 s28, s30, 6
    s_add_u32 s25, s25, s28
    s_add_u32 s27, s25, 192
    s_bitcmp1_b32 s21, 0
    s_cselect_b32 s27, 0x40000000, s27
    s_lshl_b32 s26, s22, 12
    v_lshlrev_b32 v2, 4, v1
    v_lshrrev_b32 v4, 2, v1
    v_mul_u32_u24 v4, 896, v4
    v_and_b32 v5, 3, v1
    v_lshl_add_u32 v4, v5, 4, v4""")
    def dma(ch):
        st=(ch&3)*32768
        a(f"s_add_u32 m0, s26, {st}\ns_add_u32 s28, s24, {ch*4096}")
        for e in range(4): a(f"buffer_load_dwordx4 v2, s[8:11], s28 offen offset:{e*1024} lds")
        for b in range(4):
            src = f"s_add_u32 s28, s25, {ch*64*896+b*64}" if b<3 else f"s_add_u32 s28, s27, {ch*64*896}"
            a(f"s_add_u32 m0, s26, {st+16384+b*1024}\n{src}\nbuffer_load_dwordx4 v4, s[12:15], s28 offen lds")
    a("s_setprio 3")
    dma(0)
    a("s_cmp_ge_u32 s2, 225\ns_cbranch_scc1 Lnox\ns_mov_b32 s36, s24\ns_mov_b32 s37, s25\ns_mov_b32 s38, s26\ns_mov_b32 s39, s27")
    xoff(a); srd(a,16,6,X1_OFF,X1_SZ); srd(a,40,6,WT_OFF,WT_SZ)
    a(f"""v_lshrrev_b32 v6, 3, v1
    v_xor_b32 v6, v6, v1
    v_and_b32 v6, 7, v6
    v_and_b32 v7, 56, v1
    v_add_u32 v6, v6, v7
    v_lshlrev_b32 v6, 4, v6
    s_lshl_b32 s28, s22, 10
    s_add_u32 m0, s28, {XL}
    s_add_u32 s24, s24, s28
    buffer_load_dwordx4 v6, s[16:19], s24 offen lds
    s_add_u32 m0, s28, {XL+4096}
    s_add_u32 s25, s25, s28
    buffer_load_dwordx4 v6, s[16:19], s25 offen lds
    s_lshl_b32 s28, s22, 11
    s_add_u32 m0, s28, {XL+8192}
    s_lshl_b32 s29, s2, 13
    s_add_u32 s28, s28, s29
    buffer_load_dwordx4 v2, s[40:43], s28 offen lds
    buffer_load_dwordx4 v2, s[40:43], s28 offen offset:1024 lds
    s_mov_b32 s24, s36
    s_mov_b32 s25, s37
    s_mov_b32 s26, s38
    s_mov_b32 s27, s39""")
    dma(1); a("s_waitcnt vmcnt(12)\ns_branch Lxd\nLnox:"); dma(1); a("s_waitcnt vmcnt(8)\nLxd:")
    stamp(a,1); a("s_barrier")
    dma(2)
    for i in range(1,7):
        if i<5: dma(i+2)
        a(f"s_waitcnt vmcnt({min(16,8*(6-i))})")
        if i in (3,5): stamp(a,{3:2,5:4}[i])
        a("s_barrier")
        if i in (3,4): stamp(a,{3:3,4:5}[i])
    tab_srd(a,12,'k2')
    a("""s_lshr_b32 s28, s2, 3
    s_lshl_b32 s28, s28, 2
    s_add_u32 s28, s28, s22
    s_mul_i32 s28, s28, 3200
    v_and_b32 v2, 31, v1
    v_lshlrev_b32 v2, 7, v2
    buffer_load_dword v3, v2, s[12:15], s28 offen
    s_waitcnt vmcnt(0)
    s_branch Lfin2""")
def gemm2(a):
    srd(a,16,6,P_OFF,P_SZ)
    a("""s_and_b32 s32, s22, 1
    s_lshr_b32 s33, s22, 1
    v_lshlrev_b32 v2, 4, v1
    s_lshl_b32 s28, s32, 13
    v_add_u32 v8, s28, v2
    v_add_u32 v9, 65536, v8""")
    tr_addr(a,10,True)
    a("""s_lshl_b32 s28, s33, 11
    s_add_u32 s28, s28, 16384
    v_add_u32 v10, s28, v10
    v_add_u32 v11, 65536, v10
    s_lshl_b32 s28, s20, 6
    s_add_u32 s28, s28, s23
    s_lshl_b32 s29, s32, 1
    s_add_u32 s28, s28, s29
    s_mul_i32 s28, s28, 28
    s_lshl_b32 s29, s33, 1
    s_add_u32 s29, s29, s30
    s_lshl_b32 s29, s29, 1
    s_add_u32 s28, s28, s29
    s_lshl_b32 s28, s28, 10
    s_add_u32 s29, s28, 28672
    s_and_b32 s31, s33, s21""")
    def reads(s):
        R=24+16*(s&1); st=(s>>2)&3; hi=st>>1; o=(st&1)*32768; t=s&3; g=[]
        for j in range(2):
            g.append(f"ds_read_b128 v[{R+4*j}:{R+4*j+3}], v{8+hi} offset:{o+j*4096+t*1024}")
            g.append(f"ds_read_b64_tr_b16 v[{R+8+4*j}:{R+9+4*j}], v{10+hi} offset:{o+t*4096+j*1024}")
            g.append(f"ds_read_b64_tr_b16 v[{R+10+4*j}:{R+11+4*j}], v{10+hi} offset:{o+t*4096+j*1024+256}")
        return g
    stamp(a,1)
    a("s_barrier")
    stamp(a,2)
    if DIAG: a("s_memtime s[44:45]\ns_waitcnt lgkmcnt(0)")
    for x in reads(0): a(x)
    for s in range(28):
        R=24+16*(s&1); fill=[]
        a("s_waitcnt lgkmcnt(0)")
        if (s&3)==3 and s<27: a("s_barrier")
        if s<27: fill=reads(s+1)
        k=0
        for q,(i,j) in enumerate(((0,0),(1,0),(1,1),(0,1))):
            D=64+32*i+16*j
            a(f"v_mfma_f32_32x32x16_bf16 v[{D}:{D+15}], v[{R+8+4*j}:{R+11+4*j}], v[{R+4*i}:{R+4*i+3}], "+("0" if s==0 else f"v[{D}:{D+15}]"))
            e=min(len(fill),3*(q+1))
            while k<e: a(fill[k]); k+=1
    stamp(a,3)
    if DIAG: a("s_memtime s[46:47]\ns_waitcnt lgkmcnt(0)\ns_sub_u32 s46, s46, s44\ns_mul_i32 s46, s46, 6554\ns_lshr_b32 s46, s46, 16\ns_add_u32 s68, s60, s46")
    a("s_nop 7")
    for q,(i,j) in enumerate(((0,0),(1,0),(1,1),(0,1))):
        D=64+32*i+16*j
        if q==2: a("s_bitcmp1_b32 s31, 0\ns_cbranch_scc1 Lfin2")
        for x in range(8): a(f"v_cvt_pk_bf16_f32 v{D+x}, v{D+2*x}, v{D+2*x+1}")
        a(f"buffer_store_dwordx4 v[{D}:{D+3}], v2, s[16:19], s{28+i} offen offset:{j*2048} STP")
        a(f"buffer_store_dwordx4 v[{D+4}:{D+7}], v2, s[16:19], s{28+i} offen offset:{j*2048+1024} STP")
    a("s_branch Lfin2")
def k2():
    a=Asm()
    stamp(a,0)
    a("""s_cmp_ge_u32 s2, 256
    s_cbranch_scc1 Lend2
    s_load_dwordx2 s[4:5], s[0:1], 40
    s_load_dwordx2 s[6:7], s[0:1], 64
    v_lshrrev_b32 v2, 6, v0
    v_and_b32 v1, 63, v0
    v_and_b32 v0, 255, v0
    v_readfirstlane_b32 s3, v2
    s_bfe_u32 s20, s2, 0x10002
    s_lshl_b32 s20, s20, 1
    s_bfe_u32 s28, s2, 0x10005
    s_add_u32 s20, s20, s28
    s_lshr_b32 s21, s2, 6
    s_and_b32 s28, s2, 3
    s_lshl_b32 s28, s28, 2
    s_bfe_u32 s29, s2, 0x20003
    s_add_u32 s28, s28, s29
    s_lshl_b32 s23, s28, 2
    s_mul_i32 s30, s21, 7
    s_add_u32 s30, s30, 1
    s_lshr_b32 s30, s30, 1
    s_and_b32 s22, s3, 3
    s_cmp_lt_u32 s3, 4
    s_waitcnt lgkmcnt(0)
    s_cbranch_scc1 Lg2
    s_cmp_lt_u32 s3, 8
    s_cbranch_scc1 Ll2
    s_cmp_ge_u32 s2, 225
    s_cbranch_scc1 Lend2""")
    fft(a)
    a("s_barrier\ns_barrier\ns_barrier\ns_branch Lfin2")
    a("Ll2:"); load2(a)
    a("Lg2:"); gemm2(a)
    a("Lfin2:"); flush(a,1,6,3)
    a("Lend2:\ns_endpgm")
    return a.text()
```

```python
from common import *
import os
from k1 import swap23
K3_LDS=114688; FB=57344
def k3():
    a=Asm()
    stamp(a,0)
    a("""s_cmp_ge_u32 s2, 224
    s_cbranch_scc1 Lend3
    s_load_dwordx2 s[4:5], s[0:1], 0
    s_load_dwordx2 s[6:7], s[0:1], 64
    s_load_dwordx2 s[20:21], s[0:1], 48
    v_lshrrev_b32 v2, 6, v0
    v_and_b32 v1, 63, v0
    v_readfirstlane_b32 s3, v2
    s_lshr_b32 s28, s2, 3
    s_and_b32 s30, s2, 3
    s_lshl_b32 s30, s30, 3
    s_and_b32 s29, s2, 4
    s_add_u32 s30, s30, s29
    s_and_b32 s29, s28, 3
    s_add_u32 s30, s30, s29
    s_lshr_b32 s31, s28, 2
    s_and_b32 s32, s3, 1
    s_lshr_b32 s33, s3, 1
    s_cmp_lt_u32 s3, 4
    s_cbranch_scc1 Lc3""")
    tab_srd(a,12,'k3')
    a("""s_setprio 3
    s_and_b32 s22, s3, 3
    v_lshrrev_b32 v8, 3, v1
    v_and_b32 v9, 7, v1
    v_lshrrev_b32 v10, 4, v1
    v_xor_b32 v11, v9, v10
    v_mul_u32_u24 v12, 896, v8
    v_lshl_add_u32 v12, v11, 4, v12
    v_xor_b32 v13, 64, v12
    v_and_b32 v10, 1, v10
    v_lshlrev_b32 v10, 2, v10
    v_xor_b32 v9, v9, v10
    v_lshlrev_b32 v14, 12, v8
    v_lshl_add_u32 v14, v9, 4, v14
    s_lshl_b32 s36, s22, 16
    s_lshl_b32 s28, s30, 7
    s_add_u32 s36, s36, s28
    s_lshl_b32 s37, s31, 2
    s_add_u32 s37, s37, s22
    s_mul_i32 s37, s37, 14336
    s_lshl_b32 s38, s22, 11
    s_waitcnt lgkmcnt(0)""")
    srd(a,16,6,YT_OFF,YT_SZ)
    def dma(c):
        a(f"""s_add_u32 m0, s38, {c*8192}
        s_add_u32 s28, s36, {c*262144}
        buffer_load_dwordx4 v14, s[16:19], s28 offen lds
        s_add_u32 m0, s38, {c*8192+1024}
        s_add_u32 s28, s36, {c*262144+32768}
        buffer_load_dwordx4 v14, s[16:19], s28 offen lds
        s_add_u32 m0, s38, {FB+c*8192}
        s_add_u32 s28, s37, {c*128}
        buffer_load_dwordx4 v12, s[12:15], s28 offen lds
        s_add_u32 m0, s38, {FB+c*8192+1024}
        s_add_u32 s28, s37, {c*128+7168}
        buffer_load_dwordx4 v13, s[12:15], s28 offen lds""")
    LA=int(os.environ.get('LA','4'))
    a("s_barrier")
    for c in range(LA): dma(c)
    for i in range(7):
        if i>0 and i+LA-1<7: dma(i+LA-1)
        a(f"s_waitcnt vmcnt({4*min(LA-1,6-i)})")
        if i in (0,1,3,5): stamp(a,{0:1,1:2,3:3,5:4}[i])
        a("s_barrier")
    a("s_branch Lfin3\nLc3:")
    a("""s_lshl_b32 s34, s30, 1
    s_add_u32 s34, s34, s32
    s_mul_i32 s34, s34, 28
    s_lshl_b32 s28, s31, 1
    s_add_u32 s28, s28, s33
    s_lshl_b32 s29, s28, 1
    s_add_u32 s34, s34, s29
    s_lshl_b32 s34, s34, 10
    s_lshl_b32 s35, s28, 6
    s_lshl_b32 s28, s32, 10
    s_add_u32 s28, s28, s30
    s_mul_i32 s28, s28, 896
    s_add_u32 s35, s35, s28
    v_lshlrev_b32 v2, 4, v1
    v_and_b32 v5, 31, v1
    v_lshrrev_b32 v6, 5, v1
    v_mul_u32_u24 v3, 28672, v5
    v_lshl_add_u32 v3, v6, 4, v3
    s_waitcnt lgkmcnt(0)""")
    srd(a,8,6,P_OFF,P_SZ); srd(a,24,4,0,0x1C0000)
    a("s_mov_b32 s22, 0x1C0000\ns_mov_b32 s23, 0x20000")
    for ks in range(4):
        for u in range(2): a(f"buffer_load_dwordx4 v[{32+8*ks+4*u}:{35+8*ks+4*u}], v2, s[8:11], s34 offen offset:{u*1024}")
        if ks<3: a(f"s_add_u32 s34, s34, {64*28*1024}")
    for u in range(2): a(f"buffer_load_dwordx4 v[{64+4*u}:{67+4*u}], v3, s[24:27], s35 offen offset:{u*32}")
    a("s_barrier")
    swap23(a,5,5,7)
    a(f"""s_lshl_b32 s28, s33, 12
    s_add_u32 s28, s28, {FB}
    v_bfe_u32 v7, v5, 1, 3
    v_lshlrev_b32 v5, 7, v5
    v_add_u32 v5, s28, v5""")
    for e in range(4): a(f"v_add_u32 v8, {2*e}, v6\nv_xor_b32 v8, v8, v7\nv_lshl_add_u32 v{16+e}, v8, 4, v5")
    a("""v_bfe_u32 v8, v1, 2, 2
    v_lshl_add_u32 v9, v6, 3, v8
    v_lshlrev_b32 v9, 7, v9
    v_lshrrev_b32 v8, 1, v8
    v_xor_b32 v8, s32, v8
    v_lshl_add_u32 v9, v8, 6, v9
    v_bfe_u32 v8, v1, 4, 1
    v_lshl_add_u32 v9, v8, 5, v9
    v_and_b32 v8, 3, v1
    v_lshl_add_u32 v20, v8, 3, v9""")
    a(f"s_mov_b32 s28, 0xffff0000\ns_mov_b32 s29, {hex(f32(-1.4426950408889634))}")
    stamp(a,1); a("s_waitcnt vmcnt(2)"); stamp(a,2)
    for j in range(8):
        for ks in range(4): a(f"v_lshlrev_b32 v{96+2*ks}, 16, v{32+8*ks+j}\nv_and_b32 v{97+2*ks}, s28, v{32+8*ks+j}")
        G=80+2*j
        a(f"""v_pk_add_f32 v[96:97], v[96:97], v[98:99]
        v_pk_add_f32 v[100:101], v[100:101], v[102:103]
        v_pk_add_f32 v[96:97], v[96:97], v[100:101]
        v_cvt_pk_bf16_f32 v98, v96, v97
        v_lshlrev_b32 v96, 16, v98
        v_and_b32 v97, s28, v98
        v_mul_f32 v98, s29, v96
        v_mul_f32 v99, s29, v97
        v_exp_f32 v98, v98
        v_exp_f32 v99, v99
        s_nop 0
        v_pk_add_f32 v[98:99], v[98:99], 1.0 op_sel_hi:[1,0]
        v_rcp_f32 v98, v98
        v_rcp_f32 v99, v99
        s_nop 0
        v_pk_mul_f32 v[96:97], v[96:97], v[98:99]
        v_cvt_pk_bf16_f32 v98, v96, v97
        v_lshlrev_b32 v{G}, 16, v98
        v_and_b32 v{G+1}, s28, v98""")
    def reads(s):
        b=s%3; F=32+8*b; Y=36+8*b
        return [f"ds_read_b128 v[{F}:{F+3}], v{16+(s&3)} offset:{(s>>2)*8192}",
                f"ds_read_b64_tr_b16 v[{Y}:{Y+1}], v20 offset:{s*2048}",
                f"ds_read_b64_tr_b16 v[{Y+2}:{Y+3}], v20 offset:{s*2048+512}"]
    def need(s):
        if s<28:
            if s%4==0: a("s_barrier")
            for x in reads(s): a(x)
    a("s_waitcnt vmcnt(0)")
    for j in range(8): a(f"v_lshlrev_b32 v{96+2*j}, 16, v{64+j}\nv_and_b32 v{97+2*j}, s28, v{64+j}")
    stamp(a,3)
    need(0); stamp(a,4); need(1)
    for s in range(28):
        b=s%3; F=32+8*b; Y=36+8*b
        need(s+2)
        a(f"s_waitcnt lgkmcnt({3*min(2,27-s)})")
        a(f"v_mfma_f32_32x32x16_bf16 v[112:127], v[{F}:{F+3}], v[{Y}:{Y+3}], "+("0" if s==0 else "v[112:127]"))
    stamp(a,5)
    a("s_nop 7\ns_nop 7")
    for j in range(8): a(f"v_cvt_pk_bf16_f32 v{32+j}, v{112+2*j}, v{113+2*j}")
    for j in range(8): a(f"v_lshlrev_b32 v{112+2*j}, 16, v{32+j}\nv_and_b32 v{113+2*j}, s28, v{32+j}")
    for j in range(8): a(f"v_pk_mul_f32 v[{112+2*j}:{113+2*j}], v[{112+2*j}:{113+2*j}], v[{80+2*j}:{81+2*j}]")
    for j in range(8): a(f"v_cvt_pk_bf16_f32 v{32+j}, v{112+2*j}, v{113+2*j}")
    for j in range(8): a(f"v_lshlrev_b32 v{112+2*j}, 16, v{32+j}\nv_and_b32 v{113+2*j}, s28, v{32+j}")
    for j in range(8): a(f"v_pk_add_f32 v[{112+2*j}:{113+2*j}], v[{112+2*j}:{113+2*j}], v[{96+2*j}:{97+2*j}]")
    for j in range(8): a(f"v_cvt_pk_bf16_f32 v{32+j}, v{112+2*j}, v{113+2*j}")
    for u in range(2): a(f"buffer_store_dwordx4 v[{32+4*u}:{35+4*u}], v3, s[20:23], s35 offen offset:{u*32} STO")
    a("Lfin3:"); flush(a,2,6,3)
    a("Lend3:\ns_endpgm")
    return a.text()
```

```python
from common import *
import os
ST=36864; CSP=147456; CSF=152576; RST=153216; K1_LDS=154752
def swap23(a, d, s, t):
    a(f"v_lshrrev_b32 v{t}, 1, v{s}\nv_xor_b32 v{t}, v{t}, v{s}\nv_and_b32 v{t}, 4, v{t}\nv_mul_u32_u24 v{t}, 3, v{t}\nv_xor_b32 v{d}, v{s}, v{t}")
def tr_addr(a, d, perm):
    a(f"""v_lshrrev_b32 v{d}, 5, v1
    v_bfe_u32 v17, v1, 2, 2
    v_lshl_add_u32 v{d}, v{d}, 3, v17
    v_lshlrev_b32 v{d}, 6, v{d}
    v_bfe_u32 v17, v1, 4, 1
    v_and_b32 v18, 3, v1
    v_lshl_add_u32 v17, v17, 2, v18
    v_lshlrev_b32 v17, 2, v17""")
    if perm: swap23(a,17,17,18)
    a(f"v_lshl_add_u32 v{d}, v17, 1, v{d}")
def a_addr(a, d, perm, sbase):
    a("v_and_b32 v5, 31, v1")
    if perm: swap23(a,5,5,6)
    a(f"v_lshrrev_b32 v6, 5, v1\nv_bfe_u32 v7, v5, 1, 3\nv_lshlrev_b32 v5, 7, v5\nv_add_u32 v5, s{sbase}, v5")
    for e in range(4): a(f"v_add_u32 v17, {2*e}, v6\nv_xor_b32 v17, v17, v7\nv_lshl_add_u32 v{d+e}, v17, 4, v5")
def pref(a):
    if os.environ.get('NOPF'): return
    a("""s_load_dwordx2 s[12:13], s[0:1], 40
    s_mov_b32 s14, 1605632
    s_lshr_b32 s28, s2, 3
    s_lshl_b32 s28, s28, 2
    s_add_u32 s28, s28, s22
    s_mul_i32 s28, s28, 6272
    s_bitcmp1_b32 s2, 2
    s_cselect_b32 s29, 802816, 0
    s_add_u32 s28, s28, s29
    v_lshlrev_b32 v2, 7, v1
    v_cmp_gt_u32 vcc, 49, v1
    s_and_b64 exec, exec, vcc
    s_waitcnt lgkmcnt(0)
    buffer_load_dword v3, v2, s[12:15], s28 offen
    s_barrier
    s_barrier
    s_waitcnt vmcnt(0)""")
def loader(a):
    a(f"""v_lshrrev_b32 v2, 3, v1
    v_mul_u32_u24 v2, 28672, v2
    v_and_b32 v3, 7, v1
    v_lshrrev_b32 v4, 4, v1
    v_xor_b32 v3, v3, v4
    v_lshl_add_u32 v2, v3, 4, v2
    v_xor_b32 v3, 64, v2
    s_and_b32 s28, s22, 1
    s_lshl_b32 s28, s28, 10
    s_lshr_b32 s29, s22, 1
    s_add_u32 s28, s28, s29
    s_lshl_b32 s29, s20, 1
    s_add_u32 s28, s28, s29
    s_mul_i32 s24, s28, 896
    v_lshrrev_b32 v4, 2, v1
    v_mul_lo_u32 v4, s23, v4
    v_and_b32 v5, 3, v1
    v_lshl_add_u32 v4, v5, 4, v4
    s_mul_i32 s25, s22, s23
    s_lshl_b32 s25, s25, 4
    s_mul_i32 s28, s21, 320
    s_add_u32 s25, s25, s28
    s_lshl_b32 s26, s22, 12
    s_mul_i32 s29, s22, 5120
    s_add_u32 s29, s29, 16384
    s_lshl_b32 s23, s23, 6
    s_mov_b32 s27, 0""")
    RM=int(os.environ.get('RM','7')); RS=int(os.environ.get('RS','1'))
    a(f"""s_and_b32 s28, s20, 3
    s_lshl_b32 s28, s28, 1
    s_lshr_b32 s30, s2, 5
    s_add_u32 s30, s28, s30
    s_mul_i32 s28, s30, {(255+RM)//RM}
    s_lshr_b32 s28, s28, 8
    s_mul_i32 s28, s28, {RM}
    s_sub_u32 s30, s30, s28
    s_mul_i32 s30, s30, {RS}
    s_lshl_b32 s28, s30, 7
    s_add_u32 s24, s24, s28
    s_mul_i32 s28, s30, s23
    s_add_u32 s25, s25, s28
    s_mul_i32 s31, s23, 7""")
    def dma():
        for i in range(4): a(f"s_add_u32 m0, s26, {i*1024}\ns_add_u32 s28, s24, {i*8*28672}\nbuffer_load_dwordx4 v{2+(i&1)}, s[8:11], s28 offen lds")
        for b in range(5): a(f"s_add_u32 m0, s29, {b*1024}\ns_add_u32 s28, s25, {b*64}\nbuffer_load_dwordx4 v4, s[12:15], s28 offen lds")
        a(f"""s_add_u32 s27, s27, 1
        s_add_u32 s24, s24, 128
        s_add_u32 s25, s25, s23
        s_add_u32 s30, s30, 1
        s_cmp_eq_u32 s30, 7
        s_cselect_b32 s28, 896, 0
        s_cselect_b32 s32, s31, 0
        s_sub_u32 s24, s24, s28
        s_sub_u32 s25, s25, s32
        s_and_b32 s28, s27, 3
        s_cselect_b32 s28, s38, s39
        s_add_u32 s26, s26, s28
        s_add_u32 s29, s29, s28""")
    dma(); dma(); a("s_waitcnt vmcnt(9)"); stamp(a,1); a("s_barrier")
    if os.environ.get('D2'):
        for i in range(1,7):
            if i<6: dma()
            a(f"s_waitcnt vmcnt({9 if i<6 else 0})")
            if i in (1,2,3,5): stamp(a,{0:1,1:2,2:3,3:4,5:5}[i])
            a("s_barrier")
    else:
        dma()
        for i in range(1,7):
            if i<5: dma()
            a(f"s_waitcnt vmcnt({min(18,9*(6-i))})")
            if i in (1,2,3,5): stamp(a,{0:1,1:2,2:3,3:4,5:5}[i])
            a("s_barrier")
    pref(a)
    a("s_branch Lfin1")
def stats(a):
    a("s_lshl_b32 s28, s22, 12"); a_addr(a,8,False,28); tr_addr(a,12,False)
    a("s_mul_i32 s31, s22, 5120\ns_add_u32 s31, s31, 16384\nv_add_u32 v12, s31, v12\nv_mov_b32 v79, 0x3f803f80")
    for r in range(72,79): a(f"v_mov_b32 v{r}, 0")
    a("s_mov_b32 s41, 0xffff0000")
    def dots(o):
        if os.environ.get('NODOT'): return
        if os.environ.get('PLAIN'):
            for j in range(16):
                t=60+2*(j&1)
                a(f"v_lshlrev_b32 v{t}, 16, v{o+j}\nv_and_b32 v{t+1}, s41, v{o+j}\nv_add_f32 v72, v72, v{t}\nv_fmac_f32 v73, v{t}, v{t}\nv_add_f32 v70, v70, v{t+1}\nv_fmac_f32 v71, v{t+1}, v{t+1}")
            for j in range(4):
                for b in range(5):
                    t=60+2*(b&1); r=o+16+4*b+j
                    a(f"v_lshlrev_b32 v{t}, 16, v{r}\nv_and_b32 v{t+1}, s41, v{r}\nv_add_f32 v{74+b}, v{74+b}, v{t}\nv_add_f32 v{64+b}, v{64+b}, v{t+1}")
            return
        for j in range(16): a(f"v_dot2c_f32_bf16 v72, v{o+j}, v79\nv_dot2c_f32_bf16 v73, v{o+j}, v{o+j}")
        for j in range(4):
            for b in range(5): a(f"v_dot2c_f32_bf16 v{74+b}, v{o+16+4*b+j}, v79")
    for c in range(7):
        o=24
        a("s_barrier")
        for e in range(4): a(f"ds_read_b128 v[{o+4*e}:{o+3+4*e}], v{8+e}")
        for b in range(5): a(f"ds_read_b64_tr_b16 v[{o+16+4*b}:{o+17+4*b}], v12 offset:{b*1024}\nds_read_b64_tr_b16 v[{o+18+4*b}:{o+19+4*b}], v12 offset:{b*1024+256}")
        if c<6:
            for r in range(8,13): a(f"v_add_u32 v{r}, s{39 if c==3 else 38}, v{r}")
        a("s_waitcnt lgkmcnt(0)")
        dots(24)

    a(f"""v_lshrrev_b32 v6, 5, v1
    s_lshl_b32 s28, s22, 1
    v_add_u32 v6, s28, v6
    v_mul_u32_u24 v6, 640, v6
    v_and_b32 v5, 31, v1
    v_lshl_add_u32 v6, v5, 2, v6
    v_add_u32 v6, {CSP}, v6""")
    for b in range(5): a(f"ds_write_b32 v6, v{74+b} offset:{b*128}")
    a(f"""v_mov_b32 v20, v72
    v_mov_b32 v21, v73
    s_nop 1
    v_permlane32_swap_b32 v72, v20
    v_permlane32_swap_b32 v73, v21
    s_nop 1
    v_add_f32 v72, v72, v20
    v_add_f32 v73, v73, v21
    v_mul_f32 v72, {hex(f32(1/448))}, v72
    v_mul_f32 v73, {hex(f32(1/448))}, v73
    v_fma_f32 v73, -v72, v72, v73
    v_max_f32 v73, 0, v73
    v_cvt_pk_bf16_f32 v72, v72, v73
    v_and_b32 v73, 0xffff0000, v72
    v_lshlrev_b32 v72, 16, v72
    v_add_f32 v73, {hex(f32(1e-5))}, v73
    v_cvt_pk_bf16_f32 v73, v73, v73
    v_and_b32 v73, 0xffff0000, v73
    v_sqrt_f32 v73, v73
    s_waitcnt lgkmcnt(0)
    s_barrier
    v_cvt_pk_bf16_f32 v73, v73, v73
    v_and_b32 v73, 0xffff0000, v73
    v_rcp_f32 v76, v73
    v_and_b32 v6, 255, v0
    v_lshlrev_b32 v6, 2, v6
    v_add_u32 v7, {CSP}, v6""")
    for i in range(8): a(f"ds_read_b32 v{24+i}, v7 offset:{i*640}")
    a(f"""v_mul_f32 v77, v76, v72
    s_mul_i32 s28, s22, 384
    s_add_u32 s28, s28, {RST}
    v_lshl_add_u32 v5, v5, 2, s28
    ds_write_b32 v5, v76
    ds_write_b32 v5, v77 offset:128
    ds_write_b32 v5, v72 offset:256
    s_waitcnt lgkmcnt(3)
    v_add_f32 v24, v24, v25
    v_add_f32 v26, v26, v27
    v_add_f32 v28, v28, v29
    v_add_f32 v30, v30, v31
    v_add_f32 v24, v24, v26
    v_add_f32 v28, v28, v30
    v_add_f32 v24, v24, v28
    v_cmp_gt_u32 vcc, 640, v6
    s_and_saveexec_b64 s[36:37], vcc
    v_add_u32 v7, {CSF}, v6
    ds_write_b32 v7, v24
    s_mov_b64 exec, s[36:37]
    s_waitcnt vmcnt(0) lgkmcnt(0)
    s_barrier
    s_branch Lfin1""")
def gemm(a, isF):
    T='F' if isF else 'W'
    srd(a,16,6,X1_OFF if isF else H_OFF,X1_SZ if isF else H_SZ)
    a("s_lshl_b32 s28, s22, 12"); a_addr(a,8,isF,28); tr_addr(a,12,not isF)
    a("v_add_u32 v12, 16384, v12")
    for r in range(80,160): a(f"v_mov_b32 v{r}, 0")
    def reads(t):
        bf=t&1; A=24+4*bf; B=32+20*bf
        g=[f"ds_read_b128 v[{A}:{A+3}], v{8+t}"]
        for b in range(5):
            g.append(f"ds_read_b64_tr_b16 v[{B+4*b}:{B+4*b+1}], v12 offset:{t*5120+b*1024}")
            g.append(f"ds_read_b64_tr_b16 v[{B+4*b+2}:{B+4*b+3}], v12 offset:{t*5120+b*1024+256}")
        return [] if os.environ.get('NORD') else g
    stamp(a,1)
    a("s_mov_b32 s30, 0\ns_barrier")
    stamp(a,2)
    if os.environ.get('MB'): a("s_memtime s[44:45]\ns_waitcnt lgkmcnt(0)")
    for x in reads(0): a(x)
    a(f"Lloop{T}:")
    for t in range(4):
        bf=t&1; A=24+4*bf; B=32+20*bf
        if t<3:
            a("s_waitcnt lgkmcnt(0)"); fill=reads(t+1)
        else:
            a("s_add_u32 s30, s30, 1\ns_and_b32 s28, s30, 3\ns_cselect_b32 s28, s38, s39\nv_add_u32 v8, s28, v8\nv_add_u32 v12, s28, v12")
            a("s_waitcnt lgkmcnt(0)\ns_barrier")
            fill=reads(0)+[f"v_add_u32 v{r}, s28, v{r}" for r in (9,10,11)]
        n=len(fill); k=0
        for b in range(5):
            D=80+16*b
            if isF: a(f"v_mfma_f32_32x32x16_bf16 v[{D}:{D+15}], v[{A}:{A+3}], v[{B+4*b}:{B+4*b+3}], v[{D}:{D+15}]")
            else:   a(f"v_mfma_f32_32x32x16_bf16 v[{D}:{D+15}], v[{B+4*b}:{B+4*b+3}], v[{A}:{A+3}], v[{D}:{D+15}]")
            if os.environ.get('CDOT'):
                for q in range(3 if b<3 else 2): a(f"v_dot2c_f32_bf16 v{72+q}, v{A+q}, v{A+q}")
            e=min(n,3*(b+1)+(1 if b>=3 else 0)*9)
            while k<e: a(fill[k]); k+=1
    a(f"s_cmp_lt_u32 s30, 7\ns_cbranch_scc1 Lloop{T}")
    stamp(a,3)
    if os.environ.get('MB'):
        a(f"""s_memtime s[46:47]
        s_load_dwordx2 s[48:49], s[0:1], 56
        s_waitcnt lgkmcnt(0)
        s_sub_u32 s46, s46, s44
        s_getreg_b32 s47, hwreg(HW_REG_HW_ID)
        s_mov_b32 s50, 256
        s_mov_b32 s51, 0x20000
        s_cmp_gt_u32 s2, 1
        s_cbranch_scc1 Lmb{T}
        s_lshl_b32 s44, s2, 2
        s_add_u32 s44, s44, s22
        s_lshl_b32 s44, s44, 3
        v_mov_b32 v2, s46
        v_mov_b32 v3, s47
        v_mov_b32 v4, 0
        buffer_store_dwordx2 v[2:3], v4, s[48:51], s44 offen
        Lmb{T}:""")
    a(f"v_lshrrev_b32 v6, 5, v1\nv_and_b32 v5, 31, v1\ns_mul_i32 s29, s22, 384\ns_add_u32 s29, s29, {RST}")
    if not isF:
        a(f"v_lshlrev_b32 v6, 5, v6\nv_add_u32 v6, {CSF}, v6\nv_lshlrev_b32 v7, 4, v1\nv_lshl_add_u32 v5, v5, 2, s29")
        a("s_lshl_b32 s28, s20, 2\ns_add_u32 s28, s28, s22\ns_mul_i32 s28, s28, 112\ns_mul_i32 s30, s21, 10\ns_add_u32 s28, s28, s30\ns_lshl_b32 s28, s28, 10")
        a("s_waitcnt lgkmcnt(0)\ns_barrier\nds_read_b32 v76, v5\nds_read_b32 v72, v5 offset:256")
        def csr(b):
            C=24+16*(b&1)
            for u in range(2):
                for q in range(2): a(f"ds_read_b128 v[{C+8*u+4*q}:{C+8*u+4*q+3}], v6 offset:{b*128+u*64+q*16}")
        csr(0)
        for b in range(5):
            C=24+16*(b&1); D=80+16*b
            if b<4: csr(b+1); a("s_waitcnt lgkmcnt(4)")
            else: a("s_waitcnt lgkmcnt(0)")
            for j in range(0,16,2): a(f"v_pk_fma_f32 v[{D+j}:{D+j+1}], v[{C+j}:{C+j+1}], v[72:73], v[{D+j}:{D+j+1}] op_sel_hi:[1,0,1] neg_lo:[0,1,0] neg_hi:[0,1,0]")
            for j in range(0,16,2): a(f"v_pk_mul_f32 v[{D+j}:{D+j+1}], v[{D+j}:{D+j+1}], v[76:77] op_sel_hi:[1,0]")
            for j in range(8): a(f"v_cvt_pk_bf16_f32 v{D+j}, v{D+2*j}, v{D+2*j+1}")
            for j in range(8): a(f"v_pk_max_i16 v{D+j}, v{D+j}, 0")
            a(f"buffer_store_dwordx4 v[{D}:{D+3}], v7, s[16:19], s28 offen offset:{(b&1)*2048} STH")
            a(f"buffer_store_dwordx4 v[{D+4}:{D+7}], v7, s[16:19], s28 offen offset:{(b&1)*2048+1024} STH")
            if b&1: a("s_add_u32 s28, s28, 4096")
            if b==0: a("s_cmp_eq_u32 s21, 11\ns_cbranch_scc1 Lfin1")
    else:
        a(f"""v_lshl_add_u32 v4, v6, 5, s29
        v_lshlrev_b32 v3, 2, v5
        v_add_u32 v3, {CSF}, v3
        v_lshlrev_b32 v7, 12, v5
        v_lshl_add_u32 v7, v6, 4, v7
        s_mul_i32 s28, s21, 655360
        s_lshl_b32 s30, s20, 8
        s_add_u32 s28, s28, s30
        s_lshl_b32 s30, s22, 6
        s_add_u32 s28, s28, s30
        s_waitcnt lgkmcnt(0)
        s_barrier""")
        for z in range(2):
            for u in range(2):
                for q in range(2): a(f"ds_read_b128 v[{24+16*z+8*u+4*q}:{24+16*z+8*u+4*q+3}], v4 offset:{z*128+u*64+q*16}")
        for b in range(5): a(f"ds_read_b32 v{60+2*b}, v3 offset:{b*128}")
        a("s_waitcnt lgkmcnt(0)")
        for b in range(5):
            D=80+16*b
            for j in range(0,16,2): a(f"v_pk_mul_f32 v[{D+j}:{D+j+1}], v[{D+j}:{D+j+1}], v[{24+j}:{25+j}]")
            for j in range(0,16,2): a(f"v_pk_fma_f32 v[{D+j}:{D+j+1}], v[{40+j}:{41+j}], v[{60+2*b}:{61+2*b}], v[{D+j}:{D+j+1}] op_sel_hi:[1,0,1] neg_lo:[0,1,0] neg_hi:[0,1,0]")
            for j in range(8): a(f"v_cvt_pk_bf16_f32 v{D+j}, v{D+2*j}, v{D+2*j+1}")
            a(f"buffer_store_dwordx4 v[{D}:{D+3}], v7, s[16:19], s28 offen STX")
            a(f"buffer_store_dwordx4 v[{D+4}:{D+7}], v7, s[16:19], s28 offen offset:32 STX")
            if b<4: a("s_add_u32 s28, s28, 131072")
    a("s_branch Lfin1")
def wtrans(a):
    a("s_load_dwordx4 s[24:27], s[0:1], 8\ns_waitcnt lgkmcnt(0)")
    srd(a,8,24,0,921600); srd(a,12,26,0,921600); srd(a,16,6,WT_OFF,WT_SZ)
    a("""s_lshr_b32 s24, s20, 2
    s_and_b32 s25, s20, 3
    v_lshlrev_b32 v2, 4, v1
    s_cmp_ge_u32 s3, 8
    s_cbranch_scc1 Lwt2
    s_lshr_b32 s28, s3, 2
    s_lshl_b32 s28, s28, 4
    s_and_b32 s29, s3, 3
    s_add_u32 s28, s28, s29
    s_lshl_b32 s29, s25, 2
    s_add_u32 s28, s28, s29
    s_lshl_b32 s28, s28, 2
    s_add_u32 s28, s28, s24
    s_mul_i32 s28, s28, 7200
    s_lshl_b32 s30, s3, 13
    s_add_u32 s29, s28, 4096""")
    for ri in range(2):
        for hf in range(2):
            a(f"s_add_u32 m0, s30, {ri*65536+hf*4096}\ns_nop 0")
            for q in range(4): a(f"buffer_load_dwordx4 v2, s[{8+4*ri}:{11+4*ri}], s{28+hf} offen offset:{q*1024} lds")
    a("""Lwt2:
    v_and_b32 v3, 15, v1
    v_lshrrev_b32 v4, 4, v1
    s_lshl_b32 s28, s3, 2
    v_add_u32 v4, s28, v4
    v_mul_u32_u24 v5, 450, v3
    v_lshl_add_u32 v5, v4, 1, v5
    v_add_u32 v6, 65536, v5
    v_lshlrev_b32 v7, 13, v4
    v_lshl_add_u32 v7, v3, 5, v7
    s_lshl_b32 s29, s24, 2
    s_add_u32 s29, s29, s25
    s_lshl_b32 s29, s29, 9
    s_mov_b32 s30, 0
    s_waitcnt vmcnt(0)
    s_barrier
    Lwt3:""")
    for j in range(8): a(f"ds_read_u16 v{16+j}, v5 offset:{j*8192}\nds_read_u16 v{24+j}, v6 offset:{j*8192}")
    a("""v_add_u32 v5, 96, v5
    v_add_u32 v6, 96, v6
    s_add_u32 s30, s30, 1
    s_waitcnt lgkmcnt(0)""")
    for j in range(8): a(f"v_lshl_or_b32 v{8+j}, v{24+j}, 16, v{16+j}")
    a("""buffer_store_dwordx4 v[8:11], v7, s[16:19], s29 offen STW
    buffer_store_dwordx4 v[12:15], v7, s[16:19], s29 offen offset:16 STW
    s_add_u32 s29, s29, 393216
    s_cmp_lt_u32 s30, 5
    s_cbranch_scc1 Lwt3""")
def k1():
    a=Asm()
    stamp(a,0)
    a(f"""s_cmp_ge_u32 s2, 256
    s_cbranch_scc1 Lend1
    s_load_dwordx2 s[8:9], s[0:1], 0
    s_load_dwordx2 s[12:13], s[0:1], 32
    s_load_dwordx2 s[6:7], s[0:1], 64
    v_lshrrev_b32 v2, 6, v0
    v_and_b32 v1, 63, v0
    v_readfirstlane_b32 s3, v2
    s_lshr_b32 s28, s2, 3
    s_and_b32 s20, s2, 3
    s_lshl_b32 s20, s20, 2
    s_and_b32 s29, s28, 3
    s_add_u32 s20, s20, s29
    s_lshr_b32 s21, s28, 2
    s_bfe_u32 s29, s2, 0x10002
    s_mul_i32 s30, s29, 6
    s_lshl_b32 s29, s29, 1
    s_add_u32 s29, s29, 6
    s_cmp_lt_u32 s21, 6
    s_cselect_b32 s29, s30, s29
    s_add_u32 s21, s21, s29
    s_mov_b32 s10, 0x1C0000
    s_mov_b32 s11, 0x20000
    s_mov_b32 s14, {448*3584}
    s_mov_b32 s15, 0x20000
    s_mov_b32 s38, {ST}
    s_mov_b32 s39, {-3*ST}
    s_and_b32 s22, s3, 3
    s_mov_b32 s23, 3584
    s_waitcnt lgkmcnt(0)
    s_cmp_eq_u32 s21, 15
    s_cbranch_scc1 Lwt
    s_cmp_ge_u32 s21, 12
    s_cbranch_scc1 LisF
    s_cmp_ge_u32 s3, 4
    s_cbranch_scc0 LgW
    s_branch Lload
    LisF:
    s_sub_u32 s21, s21, 12
    s_cmp_ge_u32 s3, 4
    s_cbranch_scc0 LgF
    s_mov_b32 s23, 896""")
    tab_srd(a,12,'k1')
    a("Lload:\ns_cmp_ge_u32 s3, 8\ns_cbranch_scc1 Lstat"); loader(a)
    a("Lstat:"); stats(a)
    a("LgW:"); gemm(a,False)
    a("LgF:"); gemm(a,True)
    a("Lwt:"); wtrans(a)
    a("Lfin1:"); flush(a,0,6,3)
    a("Lend1:\ns_endpgm")
    return a.text()
```

```python
import sys
from common import *
import k1,k2,k3
out=sys.argv[1] if len(sys.argv)>1 else 'recurrent_scan__spectral_gfnet__dense_activation_relu__prompt.s'
stf=sys.argv[2] if len(sys.argv)>2 else ''
hdr=open('recurrent_scan__spectral_gfnet__dense_activation_relu__prompt.s.ref').read().split('; Override launch')[0]
s=hdr
s+=f"; @launch kernel=k1_kernel grid=(256,1,1) block=(768,1,1) lds={k1.K1_LDS}\n"
s+=f"; @launch kernel=k2_kernel grid=(256,1,1) block=(768,1,1) lds={k2.K2_LDS}\n"
s+=f"; @launch kernel=k3_kernel grid=(224,1,1) block=(512,1,1) lds={k3.K3_LDS}\n"
s+='.amdgcn_target "amdgcn-amd-amdhsa--gfx950"\n.text\n'
s+=head('k1_kernel')+k1.k1()+head('k2_kernel')+k2.k2()+head('k3_kernel')+k3.k3()
import os
for k,d in (('STH','sc1'),('STP','sc1'),('STW',''),('STX','sc1'),('STY','sc1'),('STO','sc1')):
    v=os.environ.get(k,d); s=s.replace(' '+k,(' '+v) if v else '')
s+=ftable()
s+='.section .rodata,"a"\n'+desc('k1_kernel',160)+desc('k2_kernel',168)+desc('k3_kernel',128)
open(out,'w').write(s)
```

```python
from common import *
import os
ST=36864; CSP=147456; CSF=152576; RST=153216; K1_LDS=154752
def swap23(a, d, s, t):
    a(f"v_lshrrev_b32 v{t}, 1, v{s}\nv_xor_b32 v{t}, v{t}, v{s}\nv_and_b32 v{t}, 4, v{t}\nv_mul_u32_u24 v{t}, 3, v{t}\nv_xor_b32 v{d}, v{s}, v{t}")
def tr_addr(a, d, perm):
    a(f"""v_lshrrev_b32 v{d}, 5, v1
    v_bfe_u32 v17, v1, 2, 2
    v_lshl_add_u32 v{d}, v{d}, 3, v17
    v_lshlrev_b32 v{d}, 6, v{d}
    v_bfe_u32 v17, v1, 4, 1
    v_and_b32 v18, 3, v1
    v_lshl_add_u32 v17, v17, 2, v18
    v_lshlrev_b32 v17, 2, v17""")
    if perm: swap23(a,17,17,18)
    a(f"v_lshl_add_u32 v{d}, v17, 1, v{d}")
def a_addr(a, d, perm, sbase):
    a("v_and_b32 v5, 31, v1")
    if perm: swap23(a,5,5,6)
    a(f"v_lshrrev_b32 v6, 5, v1\nv_bfe_u32 v7, v5, 1, 3\nv_lshlrev_b32 v5, 7, v5\nv_add_u32 v5, s{sbase}, v5")
    for e in range(4): a(f"v_add_u32 v17, {2*e}, v6\nv_xor_b32 v17, v17, v7\nv_lshl_add_u32 v{d+e}, v17, 4, v5")
def pref(a):
    if os.environ.get('NOPF'): return
    a("""s_load_dwordx2 s[12:13], s[0:1], 40
    s_mov_b32 s14, 1605632
    s_lshr_b32 s28, s2, 3
    s_lshl_b32 s28, s28, 2
    s_add_u32 s28, s28, s22
    s_mul_i32 s28, s28, 6272
    s_bitcmp1_b32 s2, 2
    s_cselect_b32 s29, 802816, 0
    s_add_u32 s28, s28, s29
    v_lshlrev_b32 v2, 7, v1
    v_cmp_gt_u32 vcc, 49, v1
    s_and_b64 exec, exec, vcc
    s_waitcnt lgkmcnt(0)
    buffer_load_dword v3, v2, s[12:15], s28 offen
    s_barrier
    s_barrier
    s_barrier
    s_waitcnt vmcnt(0)""")
def loader(a):
    a(f"""v_lshrrev_b32 v2, 3, v1
    v_mul_u32_u24 v2, 28672, v2
    v_and_b32 v3, 7, v1
    v_lshrrev_b32 v4, 4, v1
    v_xor_b32 v3, v3, v4
    v_lshl_add_u32 v2, v3, 4, v2
    v_xor_b32 v3, 64, v2
    s_and_b32 s28, s22, 1
    s_lshl_b32 s28, s28, 10
    s_lshr_b32 s29, s22, 1
    s_add_u32 s28, s28, s29
    s_lshl_b32 s29, s20, 1
    s_add_u32 s28, s28, s29
    s_mul_i32 s24, s28, 896
    v_lshrrev_b32 v4, 2, v1
    v_mul_lo_u32 v4, s23, v4
    v_and_b32 v5, 3, v1
    v_lshl_add_u32 v4, v5, 4, v4
    s_mul_i32 s25, s22, s23
    s_lshl_b32 s25, s25, 4
    s_mul_i32 s28, s21, 320
    s_add_u32 s25, s25, s28
    s_lshl_b32 s26, s22, 12
    s_mul_i32 s29, s22, 5120
    s_add_u32 s29, s29, 16384
    s_lshl_b32 s23, s23, 6
    s_mov_b32 s27, 0""")
    RM=int(os.environ.get('RM','7')); RS=int(os.environ.get('RS','1'))
    a(f"""s_and_b32 s28, s20, 3
    s_lshl_b32 s28, s28, 1
    s_lshr_b32 s30, s2, 5
    s_add_u32 s30, s28, s30
    s_mul_i32 s28, s30, {(255+RM)//RM}
    s_lshr_b32 s28, s28, 8
    s_mul_i32 s28, s28, {RM}
    s_sub_u32 s30, s30, s28
    s_mul_i32 s30, s30, {RS}
    s_lshl_b32 s28, s30, 7
    s_add_u32 s24, s24, s28
    s_mul_i32 s28, s30, s23
    s_add_u32 s25, s25, s28
    s_mul_i32 s31, s23, 7""")
    def dma():
        for i in range(4): a(f"s_add_u32 m0, s26, {i*1024}\ns_add_u32 s28, s24, {i*8*28672}\nbuffer_load_dwordx4 v{2+(i&1)}, s[8:11], s28 offen lds")
        for b in range(5): a(f"s_add_u32 m0, s29, {b*1024}\ns_add_u32 s28, s25, {b*64}\nbuffer_load_dwordx4 v4, s[12:15], s28 offen lds")
        a(f"""s_add_u32 s27, s27, 1
        s_add_u32 s24, s24, 128
        s_add_u32 s25, s25, s23
        s_add_u32 s30, s30, 1
        s_cmp_eq_u32 s30, 7
        s_cselect_b32 s28, 896, 0
        s_cselect_b32 s32, s31, 0
        s_sub_u32 s24, s24, s28
        s_sub_u32 s25, s25, s32
        s_and_b32 s28, s27, 3
        s_cselect_b32 s28, s38, s39
        s_add_u32 s26, s26, s28
        s_add_u32 s29, s29, s28""")
    dma(); dma(); a("s_waitcnt vmcnt(9)"); stamp(a,1); a("s_barrier")
    if os.environ.get('D2'):
        for i in range(1,7):
            if i<6: dma()
            a(f"s_waitcnt vmcnt({9 if i<6 else 0})")
            if i in (1,2,3,5): stamp(a,{0:1,1:2,2:3,3:4,5:5}[i])
            a("s_barrier")
    else:
        dma()
        for i in range(1,7):
            if i<5: dma()
            a(f"s_waitcnt vmcnt({min(18,9*(6-i))})")
            if i in (1,2,3,5): stamp(a,{0:1,1:2,2:3,3:4,5:5}[i])
            a("s_barrier")
    pref(a)
    a("s_branch Lfin1")
def stats(a):
    a("s_lshl_b32 s28, s22, 12"); a_addr(a,8,False,28); tr_addr(a,12,False)
    a("s_mul_i32 s31, s22, 5120\ns_add_u32 s31, s31, 16384\nv_add_u32 v12, s31, v12\nv_mov_b32 v79, 0x3f803f80")
    for r in range(72,79): a(f"v_mov_b32 v{r}, 0")
    a("s_mov_b32 s41, 0xffff0000")
    def dots(o):
        if os.environ.get('NODOT'): return
        if os.environ.get('PLAIN'):
            for j in range(16):
                t=60+2*(j&1)
                a(f"v_lshlrev_b32 v{t}, 16, v{o+j}\nv_and_b32 v{t+1}, s41, v{o+j}\nv_add_f32 v72, v72, v{t}\nv_fmac_f32 v73, v{t}, v{t}\nv_add_f32 v70, v70, v{t+1}\nv_fmac_f32 v71, v{t+1}, v{t+1}")
            for j in range(4):
                for b in range(5):
                    t=60+2*(b&1); r=o+16+4*b+j
                    a(f"v_lshlrev_b32 v{t}, 16, v{r}\nv_and_b32 v{t+1}, s41, v{r}\nv_add_f32 v{74+b}, v{74+b}, v{t}\nv_add_f32 v{64+b}, v{64+b}, v{t+1}")
            return
        for j in range(16): a(f"v_dot2c_f32_bf16 v72, v{o+j}, v79\nv_dot2c_f32_bf16 v73, v{o+j}, v{o+j}")
        for j in range(4):
            for b in range(5): a(f"v_dot2c_f32_bf16 v{74+b}, v{o+16+4*b+j}, v79")
    for c in range(7):
        o=24
        a("s_barrier")
        for e in range(4): a(f"ds_read_b128 v[{o+4*e}:{o+3+4*e}], v{8+e}")
        for b in range(5): a(f"ds_read_b64_tr_b16 v[{o+16+4*b}:{o+17+4*b}], v12 offset:{b*1024}\nds_read_b64_tr_b16 v[{o+18+4*b}:{o+19+4*b}], v12 offset:{b*1024+256}")
        if c<6:
            for r in range(8,13): a(f"v_add_u32 v{r}, s{39 if c==3 else 38}, v{r}")
        a("s_waitcnt lgkmcnt(0)")
        dots(24)

    a(f"""v_lshrrev_b32 v6, 5, v1
    s_lshl_b32 s28, s22, 1
    v_add_u32 v6, s28, v6
    v_mul_u32_u24 v6, 640, v6
    v_and_b32 v5, 31, v1
    v_lshl_add_u32 v6, v5, 2, v6
    v_add_u32 v6, {CSP}, v6""")
    for b in range(5): a(f"ds_write_b32 v6, v{74+b} offset:{b*128}")
    a(f"""v_mov_b32 v20, v72
    v_mov_b32 v21, v73
    s_nop 1
    v_permlane32_swap_b32 v72, v20
    v_permlane32_swap_b32 v73, v21
    s_nop 1
    v_add_f32 v72, v72, v20
    v_add_f32 v73, v73, v21
    v_mul_f32 v72, {hex(f32(1/448))}, v72
    v_mul_f32 v73, {hex(f32(1/448))}, v73
    v_fma_f32 v73, -v72, v72, v73
    v_max_f32 v73, 0, v73
    v_cvt_pk_bf16_f32 v72, v72, v73
    v_and_b32 v73, 0xffff0000, v72
    v_lshlrev_b32 v72, 16, v72
    v_add_f32 v73, {hex(f32(1e-5))}, v73
    v_cvt_pk_bf16_f32 v73, v73, v73
    v_and_b32 v73, 0xffff0000, v73
    v_sqrt_f32 v73, v73
    s_waitcnt lgkmcnt(0)
    s_barrier
    v_cvt_pk_bf16_f32 v73, v73, v73
    v_and_b32 v73, 0xffff0000, v73
    v_rcp_f32 v76, v73
    v_and_b32 v6, 255, v0
    v_lshlrev_b32 v6, 2, v6
    v_add_u32 v7, {CSP}, v6""")
    for i in range(8): a(f"ds_read_b32 v{24+i}, v7 offset:{i*640}")
    a(f"""v_mul_f32 v77, v76, v72
    s_mul_i32 s28, s22, 384
    s_add_u32 s28, s28, {RST}
    v_lshl_add_u32 v5, v5, 2, s28
    ds_write_b32 v5, v76
    ds_write_b32 v5, v77 offset:128
    ds_write_b32 v5, v72 offset:256
    s_waitcnt lgkmcnt(3)
    v_add_f32 v24, v24, v25
    v_add_f32 v26, v26, v27
    v_add_f32 v28, v28, v29
    v_add_f32 v30, v30, v31
    v_add_f32 v24, v24, v26
    v_add_f32 v28, v28, v30
    v_add_f32 v24, v24, v28
    v_cmp_gt_u32 vcc, 640, v6
    s_and_saveexec_b64 s[36:37], vcc
    v_add_u32 v7, {CSF}, v6
    ds_write_b32 v7, v24
    s_mov_b64 exec, s[36:37]
    s_waitcnt vmcnt(0) lgkmcnt(0)
    s_barrier
    s_barrier
    s_branch Lfin1""")
def gemm(a, isF):
    T='F' if isF else 'W'
    srd(a,16,6,X1_OFF if isF else H_OFF,X1_SZ if isF else H_SZ)
    a("s_lshl_b32 s28, s22, 12"); a_addr(a,8,isF,28); tr_addr(a,12,not isF)
    a("v_add_u32 v12, 16384, v12")
    for r in range(80,160): a(f"v_mov_b32 v{r}, 0")
    def reads(t):
        bf=t&1; A=24+4*bf; B=32+20*bf
        g=[f"ds_read_b128 v[{A}:{A+3}], v{8+t}"]
        for b in range(5):
            g.append(f"ds_read_b64_tr_b16 v[{B+4*b}:{B+4*b+1}], v12 offset:{t*5120+b*1024}")
            g.append(f"ds_read_b64_tr_b16 v[{B+4*b+2}:{B+4*b+3}], v12 offset:{t*5120+b*1024+256}")
        return [] if os.environ.get('NORD') else g
    stamp(a,1)
    a("s_mov_b32 s30, 0\ns_barrier")
    stamp(a,2)
    if os.environ.get('MB'): a("s_memtime s[44:45]\ns_waitcnt lgkmcnt(0)")
    for x in reads(0): a(x)
    a(f"Lloop{T}:")
    for t in range(4):
        bf=t&1; A=24+4*bf; B=32+20*bf
        if t<3:
            a("s_waitcnt lgkmcnt(0)"); fill=reads(t+1)
        else:
            a("s_add_u32 s30, s30, 1\ns_and_b32 s28, s30, 3\ns_cselect_b32 s28, s38, s39\nv_add_u32 v8, s28, v8\nv_add_u32 v12, s28, v12")
            a("s_waitcnt lgkmcnt(0)\ns_barrier")
            fill=reads(0)+[f"v_add_u32 v{r}, s28, v{r}" for r in (9,10,11)]
        n=len(fill); k=0
        for b in range(5):
            D=80+16*b
            if isF: a(f"v_mfma_f32_32x32x16_bf16 v[{D}:{D+15}], v[{A}:{A+3}], v[{B+4*b}:{B+4*b+3}], v[{D}:{D+15}]")
            else:   a(f"v_mfma_f32_32x32x16_bf16 v[{D}:{D+15}], v[{B+4*b}:{B+4*b+3}], v[{A}:{A+3}], v[{D}:{D+15}]")
            if os.environ.get('CDOT'):
                for q in range(3 if b<3 else 2): a(f"v_dot2c_f32_bf16 v{72+q}, v{A+q}, v{A+q}")
            e=min(n,3*(b+1)+(1 if b>=3 else 0)*9)
            while k<e: a(fill[k]); k+=1
    a(f"s_cmp_lt_u32 s30, 7\ns_cbranch_scc1 Lloop{T}")
    stamp(a,3)
    if os.environ.get('MB'):
        a(f"""s_memtime s[46:47]
        s_load_dwordx2 s[48:49], s[0:1], 56
        s_waitcnt lgkmcnt(0)
        s_sub_u32 s46, s46, s44
        s_getreg_b32 s47, hwreg(HW_REG_HW_ID)
        s_mov_b32 s50, 256
        s_mov_b32 s51, 0x20000
        s_cmp_gt_u32 s2, 1
        s_cbranch_scc1 Lmb{T}
        s_lshl_b32 s44, s2, 2
        s_add_u32 s44, s44, s22
        s_lshl_b32 s44, s44, 3
        v_mov_b32 v2, s46
        v_mov_b32 v3, s47
        v_mov_b32 v4, 0
        buffer_store_dwordx2 v[2:3], v4, s[48:51], s44 offen
        Lmb{T}:""")
    a(f"v_lshrrev_b32 v6, 5, v1\nv_and_b32 v5, 31, v1\ns_mul_i32 s29, s22, 384\ns_add_u32 s29, s29, {RST}")
    if not isF:
        a(f"v_lshlrev_b32 v6, 5, v6\nv_add_u32 v6, {CSF}, v6\nv_lshlrev_b32 v7, 4, v1\nv_lshl_add_u32 v5, v5, 2, s29")
        a("s_lshl_b32 s28, s20, 2\ns_add_u32 s28, s28, s22\ns_mul_i32 s28, s28, 112\ns_mul_i32 s30, s21, 10\ns_add_u32 s28, s28, s30\ns_lshl_b32 s28, s28, 10")
        a("s_waitcnt lgkmcnt(0)\ns_barrier\ns_barrier\nds_read_b32 v76, v5\nds_read_b32 v72, v5 offset:256")
        def csr(b):
            C=24+16*(b&1)
            for u in range(2):
                for q in range(2): a(f"ds_read_b128 v[{C+8*u+4*q}:{C+8*u+4*q+3}], v6 offset:{b*128+u*64+q*16}")
        csr(0)
        for b in range(5):
            C=24+16*(b&1); D=80+16*b
            if b<4: csr(b+1); a("s_waitcnt lgkmcnt(4)")
            else: a("s_waitcnt lgkmcnt(0)")
            for j in range(0,16,2): a(f"v_pk_fma_f32 v[{D+j}:{D+j+1}], v[{C+j}:{C+j+1}], v[72:73], v[{D+j}:{D+j+1}] op_sel_hi:[1,0,1] neg_lo:[0,1,0] neg_hi:[0,1,0]")
            for j in range(0,16,2): a(f"v_pk_mul_f32 v[{D+j}:{D+j+1}], v[{D+j}:{D+j+1}], v[76:77] op_sel_hi:[1,0]")
            for j in range(8): a(f"v_cvt_pk_bf16_f32 v{D+j}, v{D+2*j}, v{D+2*j+1}")
            for j in range(8): a(f"v_pk_max_i16 v{D+j}, v{D+j}, 0")
            a(f"buffer_store_dwordx4 v[{D}:{D+3}], v7, s[16:19], s28 offen offset:{(b&1)*2048} STH")
            a(f"buffer_store_dwordx4 v[{D+4}:{D+7}], v7, s[16:19], s28 offen offset:{(b&1)*2048+1024} STH")
            if b&1: a("s_add_u32 s28, s28, 4096")
            if b==0: a("s_cmp_eq_u32 s21, 11\ns_cbranch_scc1 Lfin1")
    else:
        a(f"""v_lshl_add_u32 v4, v6, 5, s29
        v_lshlrev_b32 v3, 2, v5
        v_add_u32 v3, {CSF}, v3
        v_mul_u32_u24 v7, 272, v5
        v_lshl_add_u32 v7, v6, 4, v7
        s_lshl_b32 s30, s22, 6
        v_add_u32 v7, s30, v7
        v_lshrrev_b32 v8, 4, v1
        v_and_b32 v9, 15, v1
        v_lshlrev_b32 v9, 4, v9
        v_lshl_add_u32 v10, v8, 12, v9
        v_mul_u32_u24 v8, 272, v8
        s_mul_i32 s30, s22, 10880
        v_add3_u32 v8, v8, v9, s30
        s_mul_i32 s28, s21, 655360
        s_lshl_b32 s30, s20, 8
        s_add_u32 s28, s28, s30
        s_mul_i32 s30, s22, 163840
        s_add_u32 s28, s28, s30
        s_waitcnt lgkmcnt(0)
        s_barrier""")
        for z in range(2):
            for u in range(2):
                for q in range(2): a(f"ds_read_b128 v[{24+16*z+8*u+4*q}:{24+16*z+8*u+4*q+3}], v4 offset:{z*128+u*64+q*16}")
        for b in range(5): a(f"ds_read_b32 v{60+2*b}, v3 offset:{b*128}")
        a("s_waitcnt lgkmcnt(0)")
        for b in range(5):
            D=80+16*b
            for j in range(0,16,2): a(f"v_pk_mul_f32 v[{D+j}:{D+j+1}], v[{D+j}:{D+j+1}], v[{24+j}:{25+j}]")
            for j in range(0,16,2): a(f"v_pk_fma_f32 v[{D+j}:{D+j+1}], v[{40+j}:{41+j}], v[{60+2*b}:{61+2*b}], v[{D+j}:{D+j+1}] op_sel_hi:[1,0,1] neg_lo:[0,1,0] neg_hi:[0,1,0]")
            for j in range(8): a(f"v_cvt_pk_bf16_f32 v{D+j}, v{D+2*j}, v{D+2*j+1}")
            a(f"ds_write_b128 v7, v[{D}:{D+3}] offset:{b*8704}\nds_write_b128 v7, v[{D+4}:{D+7}] offset:{b*8704+32}")
        a("s_waitcnt lgkmcnt(0)\ns_barrier")
        for q in range(10): a(f"ds_read_b128 v[{80+4*q}:{83+4*q}], v8 offset:{q*1088}")
        for q in range(10): a(f"s_waitcnt lgkmcnt({9-q})\nbuffer_store_dwordx4 v[{80+4*q}:{83+4*q}], v10, s[16:19], s28 offen STX\ns_add_u32 s28, s28, 16384")
    a("s_branch Lfin1")
def wtrans(a):
    a("s_load_dwordx4 s[24:27], s[0:1], 8\ns_waitcnt lgkmcnt(0)")
    srd(a,8,24,0,921600); srd(a,12,26,0,921600); srd(a,16,6,WT_OFF,WT_SZ)
    a("""s_lshr_b32 s24, s20, 2
    s_and_b32 s25, s20, 3
    v_lshlrev_b32 v2, 4, v1
    s_cmp_ge_u32 s3, 8
    s_cbranch_scc1 Lwt2
    s_lshr_b32 s28, s3, 2
    s_lshl_b32 s28, s28, 4
    s_and_b32 s29, s3, 3
    s_add_u32 s28, s28, s29
    s_lshl_b32 s29, s25, 2
    s_add_u32 s28, s28, s29
    s_lshl_b32 s28, s28, 2
    s_add_u32 s28, s28, s24
    s_mul_i32 s28, s28, 7200
    s_lshl_b32 s30, s3, 13
    s_add_u32 s29, s28, 4096""")
    for ri in range(2):
        for hf in range(2):
            a(f"s_add_u32 m0, s30, {ri*65536+hf*4096}\ns_nop 0")
            for q in range(4): a(f"buffer_load_dwordx4 v2, s[{8+4*ri}:{11+4*ri}], s{28+hf} offen offset:{q*1024} lds")
    a("""Lwt2:
    v_and_b32 v3, 15, v1
    v_lshrrev_b32 v4, 4, v1
    s_lshl_b32 s28, s3, 2
    v_add_u32 v4, s28, v4
    v_lshrrev_b32 v5, 1, v3
    v_mul_u32_u24 v5, 450, v5
    v_lshl_add_u32 v5, v4, 1, v5
    v_and_b32 v6, 1, v1
    v_lshl_add_u32 v5, v6, 15, v5
    v_add_u32 v6, 65536, v5
    v_lshlrev_b32 v7, 13, v4
    v_lshl_add_u32 v7, v3, 4, v7
    s_lshl_b32 s29, s24, 2
    s_add_u32 s29, s29, s25
    s_lshl_b32 s29, s29, 9
    s_mov_b32 s30, 0
    s_waitcnt vmcnt(0)
    s_barrier
    Lwt3:""")
    for j in range(8): a(f"ds_read_u16 v{16+j}, v5 offset:{(j&3)*8192+(j>>2)*3600}\nds_read_u16 v{24+j}, v6 offset:{(j&3)*8192+(j>>2)*3600}")
    a("""v_add_u32 v5, 96, v5
    v_add_u32 v6, 96, v6
    s_add_u32 s30, s30, 1
    s_waitcnt lgkmcnt(0)""")
    for j in range(8): a(f"v_lshl_or_b32 v{8+j}, v{24+j}, 16, v{16+j}")
    a("""buffer_store_dwordx4 v[8:11], v7, s[16:19], s29 offen STW
    buffer_store_dwordx4 v[12:15], v7, s[16:19], s29 offen offset:256 STW
    s_add_u32 s29, s29, 393216
    s_cmp_lt_u32 s30, 5
    s_cbranch_scc1 Lwt3""")
def k1():
    a=Asm()
    stamp(a,0)
    a(f"""s_cmp_ge_u32 s2, 256
    s_cbranch_scc1 Lend1
    s_load_dwordx2 s[8:9], s[0:1], 0
    s_load_dwordx2 s[12:13], s[0:1], 32
    s_load_dwordx2 s[6:7], s[0:1], 64
    v_lshrrev_b32 v2, 6, v0
    v_and_b32 v1, 63, v0
    v_readfirstlane_b32 s3, v2
    s_lshr_b32 s28, s2, 3
    s_and_b32 s20, s2, 3
    s_lshl_b32 s20, s20, 2
    s_and_b32 s29, s28, 3
    s_add_u32 s20, s20, s29
    s_lshr_b32 s21, s28, 2
    s_bfe_u32 s29, s2, 0x10002
    s_mul_i32 s30, s29, 6
    s_lshl_b32 s29, s29, 1
    s_add_u32 s29, s29, 6
    s_cmp_lt_u32 s21, 6
    s_cselect_b32 s29, s30, s29
    s_add_u32 s21, s21, s29
    s_mov_b32 s10, 0x1C0000
    s_mov_b32 s11, 0x20000
    s_mov_b32 s14, {448*3584}
    s_mov_b32 s15, 0x20000
    s_mov_b32 s38, {ST}
    s_mov_b32 s39, {-3*ST}
    s_and_b32 s22, s3, 3
    s_mov_b32 s23, 3584
    s_waitcnt lgkmcnt(0)
    s_cmp_eq_u32 s21, 15
    s_cbranch_scc1 Lwt
    s_cmp_ge_u32 s21, 12
    s_cbranch_scc1 LisF
    s_cmp_ge_u32 s3, 4
    s_cbranch_scc0 LgW
    s_branch Lload
    LisF:
    s_sub_u32 s21, s21, 12
    s_cmp_ge_u32 s3, 4
    s_cbranch_scc0 LgF
    s_mov_b32 s23, 896""")
    tab_srd(a,12,'k1')
    a("Lload:\ns_cmp_ge_u32 s3, 8\ns_cbranch_scc1 Lstat"); loader(a)
    a("Lstat:"); stats(a)
    a("LgW:"); gemm(a,False)
    a("LgF:"); gemm(a,True)
    a("Lwt:"); wtrans(a)
    a("Lfin1:"); flush(a,0,6,3)
    a("Lend1:\ns_endpgm")
    return a.text()
```

```python
from common import *
from k1 import swap23, tr_addr
K2_LDS=131072+9216+16384
def mf16(a,D,A,B,C=None):
    c = f"v[{D}:{D+3}]" if C is None else C
    a(f"v_mfma_f32_16x16x32_bf16 v[{D}:{D+3}], v[{A}:{A+3}], v[{B}:{B+3}], {c}")
XL=131072+9216
def xoff(a):
    a(f"""s_mul_i32 s24, s2, 8704
    s_add_u32 s25, s24, 4352
    s_mov_b32 s26, {hex(f32(2/917504))}
    s_cmp_eq_u32 s2, 224
    s_cselect_b32 s24, 4352, s24
    s_cselect_b32 s27, 0, s2
    s_cmp_eq_u32 s27, 0
    s_cselect_b32 s25, 0x40000000, s25
    s_cselect_b32 s26, {hex(f32(1/917504))}, s26""")
def fft(a):
    srd(a,16,6,YT_OFF,YT_SZ)
    xoff(a)
    a(f"""v_and_b32 v2, 15, v1
    v_lshrrev_b32 v3, 4, v1
    v_lshlrev_b32 v4, 7, v2
    v_and_b32 v5, 7, v1
    v_xor_b32 v5, v5, v3
    v_lshl_add_u32 v5, v5, 4, v4
    v_add_u32 v5, {XL}, v5
    v_lshlrev_b32 v40, 5, v0
    v_add_u32 v40, {XL+8192}, v40
    v_xor_b32 v41, 64, v5""")
    a("""v_cvt_f32_u32 v152, v2
    v_cvt_f32_u32 v153, v3
    s_lshl_b32 s28, s22, 4
    v_cvt_f32_u32 v155, s28
    v_add_f32 v154, v152, v155""")
    def trig4(C,S):
        for j in range(4):
            a(f"v_cos_f32 v{C+j}, v158\nv_sin_f32 v{S+j}, v158")
            if j<3: a("v_add_f32 v158, v158, v156")
    def rot4(C,S,C2,S2):
        a("v_cos_f32 v144, v159\nv_sin_f32 v146, v159\ns_nop 0")
        for j in (0,2):
            a(f"v_pk_mul_f32 v[{C2+j}:{C2+j+1}], v[{C+j}:{C+j+1}], v[144:145] op_sel_hi:[1,0]")
            a(f"v_pk_mul_f32 v[{S2+j}:{S2+j+1}], v[{S+j}:{S+j+1}], v[144:145] op_sel_hi:[1,0]")
        for j in (0,2):
            a(f"v_pk_fma_f32 v[{C2+j}:{C2+j+1}], v[{S+j}:{S+j+1}], v[146:147], v[{C2+j}:{C2+j+1}] op_sel_hi:[1,0,1] neg_lo:[1,0,0] neg_hi:[1,0,0]")
            a(f"v_pk_fma_f32 v[{S2+j}:{S2+j+1}], v[{C+j}:{C+j+1}], v[146:147], v[{S2+j}:{S2+j+1}] op_sel_hi:[1,0,1]")
    a(f"""s_mov_b32 s29, 0x80008000
    s_brev_b32 s30, 1
    v_and_b32 v148, 1, v1
    v_mul_lo_u32 v148, v148, s29
    v_mul_f32 v156, {hex(f32(1/64))}, v154
    v_mul_f32 v157, {hex(f32(8.0))}, v153
    v_mul_f32 v158, v156, v157
    v_mul_f32 v159, 4.0, v156""")
    trig4(160,164); rot4(160,164,128,132)
    for j in range(2):
        a(f"v_cvt_pk_bf16_f32 v{48+j}, v{160+2*j}, v{161+2*j}\nv_cvt_pk_bf16_f32 v{56+j}, v{164+2*j}, v{165+2*j}")
        a(f"v_cvt_pk_bf16_f32 v{50+j}, v{128+2*j}, v{129+2*j}\nv_cvt_pk_bf16_f32 v{58+j}, v{132+2*j}, v{133+2*j}")
    for j in range(4): a(f"v_xor_b32 v{52+j}, v148, v{48+j}\nv_xor_b32 v{60+j}, v148, v{56+j}")
    for j in range(8): a(f"v_xor_b32 v{64+j}, s29, v{56+j}")
    a(f"v_mul_f32 v157, 4.0, v153\nv_mul_f32 v156, {hex(f32(1/2048))}, v154\nv_mul_f32 v158, v156, v157\nv_mul_f32 v159, {hex(f32(16.0))}, v156")
    trig4(96,104); rot4(96,104,100,108)
    a(f"v_mul_f32 v156, {hex(f32(1/32))}, v152\nv_mul_f32 v158, v156, v157")
    trig4(160,164)
    a("s_nop 0")
    for j in range(2): a(f"v_cvt_pk_bf16_f32 v{72+j}, v{160+2*j}, v{161+2*j}\nv_cvt_pk_bf16_f32 v{80+j}, v{164+2*j}, v{165+2*j}")
    for j in range(2): a(f"v_xor_b32 v{74+j}, v148, v{72+j}\nv_xor_b32 v{82+j}, v148, v{80+j}\nv_xor_b32 v{88+j}, s29, v{80+j}")
    for j in range(2): a(f"v_xor_b32 v{90+j}, s29, v{82+j}")
    for j in range(4): a(f"v_xor_b32 v{76+j}, s30, v{72+j}\nv_xor_b32 v{84+j}, s30, v{80+j}\nv_xor_b32 v{92+j}, s30, v{88+j}")
    stamp(a,1)
    a("s_barrier")
    a(f"v_add_f32 v157, v157, v155\nv_mul_f32 v156, {hex(f32(1/2048))}, v152\nv_mul_f32 v158, v156, v157")
    trig4(112,120)
    a("s_nop 0")
    for r in (112,114,120,122): a(f"v_pk_mul_f32 v[{r}:{r+1}], v[{r}:{r+1}], s[26:27] op_sel_hi:[1,0]")
    a(f"v_add_f32 v156, {hex(f32(16/2048))}, v156\nv_mul_f32 v158, v156, v157")
    trig4(116,124)
    a("s_nop 0")
    for r in (116,118,124,126): a(f"v_pk_mul_f32 v[{r}:{r+1}], v[{r}:{r+1}], s[26:27] op_sel_hi:[1,0]")
    a("""v_mul_u32_u24 v7, 144, v2
    v_add_u32 v7, 131072, v7
    s_lshl_b32 s28, s22, 5
    v_lshl_add_u32 v6, v3, 3, v7
    v_add_u32 v6, s28, v6
    v_lshl_add_u32 v7, v3, 4, v7
    v_add_u32 v4, 9216, v6""")
    DR,DI=128,136
    a("s_barrier")
    stamp(a,2)
    for ks in range(2):
        for blk in range(2):
            a(f"ds_read_b128 v[{8+blk*8+ks*4}:{11+blk*8+ks*4}], v{41 if ks else 5} offset:{blk*2048}")
            a(f"ds_read_b128 v[{24+blk*8+ks*4}:{27+blk*8+ks*4}], v{41 if ks else 5} offset:{blk*2048+4096}")
    a("ds_read_b128 v[44:47], v40 offset:16\nds_read_b128 v[40:43], v40\ns_waitcnt lgkmcnt(2)")
    a("s_cmp_lt_u32 s25, 0x40000000\ns_cbranch_scc1 Lhasim")
    for r in range(24,40): a(f"v_mov_b32 v{r}, 0")
    a("s_nop 1\nLhasim:")
    for ks in range(2):
        for blk in range(2):
            XR=8+blk*8+ks*4; XI=24+blk*8+ks*4
            mf16(a,DR+4*blk,XR,48+4*ks,'0' if ks==0 else None); mf16(a,DI+4*blk,XI,48+4*ks,'0' if ks==0 else None)
        for blk in range(2):
            XR=8+blk*8+ks*4; XI=24+blk*8+ks*4
            mf16(a,DR+4*blk,XI,56+4*ks); mf16(a,DI+4*blk,XR,64+4*ks)
    def cmul(C,S,sgn):
        a("s_nop 6")
        n1,n2=('-','') if sgn>0 else ('','-')
        for j in range(0,8,2):
            a(f"v_pk_mul_f32 v[{152+j}:{153+j}], v[{DR+j}:{DR+j+1}], v[{C+j}:{C+j+1}]")
            a(f"v_pk_mul_f32 v[{160+j}:{161+j}], v[{DI+j}:{DI+j+1}], v[{C+j}:{C+j+1}]")
        for j in range(0,8,2):
            m1=" neg_lo:[1,0,0] neg_hi:[1,0,0]" if sgn>0 else ""
            m2=" neg_lo:[1,0,0] neg_hi:[1,0,0]" if sgn<0 else ""
            a(f"v_pk_fma_f32 v[{152+j}:{153+j}], v[{DI+j}:{DI+j+1}], v[{S+j}:{S+j+1}], v[{152+j}:{153+j}]{m1}")
            a(f"v_pk_fma_f32 v[{160+j}:{161+j}], v[{DR+j}:{DR+j+1}], v[{S+j}:{S+j+1}], v[{160+j}:{161+j}]{m2}")
        for j in range(4):
            a(f"v_cvt_pk_bf16_f32 v{144+j}, v{152+2*j}, v{153+2*j}\nv_cvt_pk_bf16_f32 v{148+j}, v{160+2*j}, v{161+2*j}")
        a("s_nop 1")
    cmul(96,104,-1)
    for blk in range(2): mf16(a,DR+4*blk,72+4*blk,144,'0'); mf16(a,DI+4*blk,72+4*blk,148,'0')
    for blk in range(2): mf16(a,DR+4*blk,80+4*blk,148); mf16(a,DI+4*blk,88+4*blk,144)
    a("s_waitcnt lgkmcnt(0)\ns_barrier")
    for j in range(8): a(f"v_lshlrev_b32 v{8+j}, 16, v{40+j}\nv_and_b32 v{16+j}, 0xffff0000, v{40+j}")
    cmul(8,16,+1)
    for blk in range(2): mf16(a,DR+4*blk,144,72+4*blk,'0'); mf16(a,DI+4*blk,148,72+4*blk,'0')
    for blk in range(2): mf16(a,DR+4*blk,148,88+4*blk); mf16(a,DI+4*blk,144,80+4*blk)
    cmul(112,120,+1)
    for blk in range(2):
        a(f"ds_write_b64 v6, v[{144+2*blk}:{145+2*blk}] offset:{blk*2304}\nds_write_b64 v6, v[{148+2*blk}:{149+2*blk}] offset:{4608+blk*2304}")
    stamp(a,3)
    a("s_waitcnt lgkmcnt(0)\ns_barrier")
    stamp(a,4)
    for ks in range(2):
        for blk in range(2):
            a(f"ds_read_b128 v[{8+blk*8+ks*4}:{11+blk*8+ks*4}], v7 offset:{blk*2304+ks*64}")
            a(f"ds_read_b128 v[{24+blk*8+ks*4}:{27+blk*8+ks*4}], v7 offset:{4608+blk*2304+ks*64}")
    for ks in range(2):
        a(f"s_waitcnt lgkmcnt({4-4*ks})")
        for blk in range(2):
            XR=8+blk*8+ks*4; XI=24+blk*8+ks*4
            mf16(a,DR+4*blk,48+4*ks,XR,'0' if ks==0 else None); mf16(a,DI+4*blk,48+4*ks,XI,'0' if ks==0 else None)
        for blk in range(2):
            XR=8+blk*8+ks*4; XI=24+blk*8+ks*4
            mf16(a,DR+4*blk,64+4*ks,XI); mf16(a,DI+4*blk,56+4*ks,XR)
    a("s_nop 6")
    for j in range(4):
        a(f"v_cvt_pk_bf16_f32 v{144+j}, v{DR+2*j}, v{DR+2*j+1}\nv_cvt_pk_bf16_f32 v{148+j}, v{DI+2*j}, v{DI+2*j+1}")
    for blk in range(2):
        a(f"ds_write_b64 v4, v[{144+2*blk}:{145+2*blk}] offset:{blk*2304}\nds_write_b64 v4, v[{148+2*blk}:{149+2*blk}] offset:{4608+blk*2304}")
    a(f"""v_lshrrev_b32 v5, 3, v1
    v_mul_u32_u24 v5, 144, v5
    v_and_b32 v6, 7, v1
    v_lshl_add_u32 v5, v6, 4, v5
    s_mul_i32 s28, s22, 1152
    s_add_u32 s28, s28, {XL}
    v_add_u32 v5, s28, v5
    v_lshlrev_b32 v6, 4, v0
    s_waitcnt lgkmcnt(0)
    s_barrier
    ds_read_b128 v[8:11], v5
    ds_read_b128 v[12:15], v5 offset:4608
    s_waitcnt lgkmcnt(1)
    buffer_store_dwordx4 v[8:11], v6, s[16:19], s24 offen STY
    s_waitcnt lgkmcnt(0)
    buffer_store_dwordx4 v[12:15], v6, s[16:19], s25 offen STY""")
def load2(a):
    srd(a,8,6,H_OFF,H_SZ); srd(a,12,4,0,1792*896)
    a("""s_add_u32 s24, s23, s22
    s_mul_i32 s24, s24, 112
    s_mul_i32 s28, s20, 28
    s_add_u32 s24, s24, s28
    s_lshl_b32 s24, s24, 10
    s_mul_i32 s25, s20, 448
    s_lshl_b32 s28, s22, 4
    s_add_u32 s25, s25, s28
    s_mul_i32 s25, s25, 896
    s_lshl_b32 s28, s30, 6
    s_add_u32 s25, s25, s28
    s_add_u32 s27, s25, 192
    s_bitcmp1_b32 s21, 0
    s_cselect_b32 s27, 0x40000000, s27
    s_lshl_b32 s26, s22, 12
    v_lshlrev_b32 v2, 4, v1
    v_lshrrev_b32 v4, 2, v1
    v_mul_u32_u24 v4, 896, v4
    v_and_b32 v5, 3, v1
    v_lshl_add_u32 v4, v5, 4, v4""")
    def dma(ch):
        st=(ch&3)*32768
        a(f"s_add_u32 m0, s26, {st}\ns_add_u32 s28, s24, {ch*4096}")
        for e in range(4): a(f"buffer_load_dwordx4 v2, s[8:11], s28 offen offset:{e*1024} lds")
        for b in range(4):
            src = f"s_add_u32 s28, s25, {ch*64*896+b*64}" if b<3 else f"s_add_u32 s28, s27, {ch*64*896}"
            a(f"s_add_u32 m0, s26, {st+16384+b*1024}\n{src}\nbuffer_load_dwordx4 v4, s[12:15], s28 offen lds")
    a("s_setprio 3")
    dma(0)
    a("s_cmp_ge_u32 s2, 225\ns_cbranch_scc1 Lnox\ns_mov_b32 s36, s24\ns_mov_b32 s37, s25\ns_mov_b32 s38, s26\ns_mov_b32 s39, s27")
    xoff(a); srd(a,16,6,X1_OFF,X1_SZ); srd(a,40,6,WT_OFF,WT_SZ)
    a(f"""v_lshrrev_b32 v6, 3, v1
    v_xor_b32 v6, v6, v1
    v_and_b32 v6, 7, v6
    v_and_b32 v7, 56, v1
    v_add_u32 v6, v6, v7
    v_lshlrev_b32 v6, 4, v6
    s_lshl_b32 s28, s22, 10
    s_add_u32 m0, s28, {XL}
    s_add_u32 s24, s24, s28
    buffer_load_dwordx4 v6, s[16:19], s24 offen lds
    s_add_u32 m0, s28, {XL+4096}
    s_add_u32 s25, s25, s28
    buffer_load_dwordx4 v6, s[16:19], s25 offen lds
    s_lshl_b32 s28, s22, 11
    s_add_u32 m0, s28, {XL+8192}
    s_lshl_b32 s29, s2, 13
    s_add_u32 s28, s28, s29
    buffer_load_dwordx4 v2, s[40:43], s28 offen lds
    buffer_load_dwordx4 v2, s[40:43], s28 offen offset:1024 lds
    s_mov_b32 s24, s36
    s_mov_b32 s25, s37
    s_mov_b32 s26, s38
    s_mov_b32 s27, s39""")
    dma(1); a("s_waitcnt vmcnt(12)\ns_branch Lxd\nLnox:"); dma(1); a("s_waitcnt vmcnt(8)\nLxd:")
    stamp(a,1); a("s_barrier")
    dma(2)
    for i in range(1,7):
        if i<5: dma(i+2)
        a(f"s_waitcnt vmcnt({min(16,8*(6-i))})")
        if i in (3,5): stamp(a,{3:2,5:4}[i])
        a("s_barrier")
        if i in (3,4): stamp(a,{3:3,4:5}[i])
    tab_srd(a,12,'k2')
    a("""s_lshr_b32 s28, s2, 3
    s_lshl_b32 s28, s28, 2
    s_add_u32 s28, s28, s22
    s_mul_i32 s28, s28, 3200
    v_and_b32 v2, 31, v1
    v_lshlrev_b32 v2, 7, v2
    buffer_load_dword v3, v2, s[12:15], s28 offen
    s_waitcnt vmcnt(0)
    s_branch Lfin2""")
def gemm2(a):
    srd(a,16,6,P_OFF,P_SZ)
    a("""s_and_b32 s32, s22, 1
    s_lshr_b32 s33, s22, 1
    v_lshlrev_b32 v2, 4, v1
    s_lshl_b32 s28, s32, 13
    v_add_u32 v8, s28, v2
    v_add_u32 v9, 65536, v8""")
    tr_addr(a,10,True)
    a("""s_lshl_b32 s28, s33, 11
    s_add_u32 s28, s28, 16384
    v_add_u32 v10, s28, v10
    v_add_u32 v11, 65536, v10
    s_lshl_b32 s28, s20, 6
    s_add_u32 s28, s28, s23
    s_lshl_b32 s29, s32, 1
    s_add_u32 s28, s28, s29
    s_mul_i32 s28, s28, 28
    s_lshl_b32 s29, s33, 1
    s_add_u32 s29, s29, s30
    s_lshl_b32 s29, s29, 1
    s_add_u32 s28, s28, s29
    s_lshl_b32 s28, s28, 10
    s_add_u32 s29, s28, 28672
    s_and_b32 s31, s33, s21""")
    def reads(s):
        R=24+16*(s&1); st=(s>>2)&3; hi=st>>1; o=(st&1)*32768; t=s&3; g=[]
        for j in range(2):
            g.append(f"ds_read_b128 v[{R+4*j}:{R+4*j+3}], v{8+hi} offset:{o+j*4096+t*1024}")
            g.append(f"ds_read_b64_tr_b16 v[{R+8+4*j}:{R+9+4*j}], v{10+hi} offset:{o+t*4096+j*1024}")
            g.append(f"ds_read_b64_tr_b16 v[{R+10+4*j}:{R+11+4*j}], v{10+hi} offset:{o+t*4096+j*1024+256}")
        return g
    stamp(a,1)
    a("s_barrier")
    stamp(a,2)
    if DIAG: a("s_memtime s[44:45]\ns_waitcnt lgkmcnt(0)")
    for x in reads(0): a(x)
    for s in range(28):
        R=24+16*(s&1); fill=[]
        a("s_waitcnt lgkmcnt(0)")
        if (s&3)==3 and s<27: a("s_barrier")
        if s<27: fill=reads(s+1)
        k=0
        for q,(i,j) in enumerate(((0,0),(1,0),(1,1),(0,1))):
            D=64+32*i+16*j
            a(f"v_mfma_f32_32x32x16_bf16 v[{D}:{D+15}], v[{R+8+4*j}:{R+11+4*j}], v[{R+4*i}:{R+4*i+3}], "+("0" if s==0 else f"v[{D}:{D+15}]"))
            e=min(len(fill),3*(q+1))
            while k<e: a(fill[k]); k+=1
    stamp(a,3)
    if DIAG: a("s_memtime s[46:47]\ns_waitcnt lgkmcnt(0)\ns_sub_u32 s46, s46, s44\ns_mul_i32 s46, s46, 6554\ns_lshr_b32 s46, s46, 16\ns_add_u32 s68, s60, s46")
    a("s_nop 7")
    for q,(i,j) in enumerate(((0,0),(1,0),(1,1),(0,1))):
        D=64+32*i+16*j
        if q==2: a("s_bitcmp1_b32 s31, 0\ns_cbranch_scc1 Lfin2")
        for x in range(8): a(f"v_cvt_pk_bf16_f32 v{D+x}, v{D+2*x}, v{D+2*x+1}")
        a(f"buffer_store_dwordx4 v[{D}:{D+3}], v2, s[16:19], s{28+i} offen offset:{j*2048} STP")
        a(f"buffer_store_dwordx4 v[{D+4}:{D+7}], v2, s[16:19], s{28+i} offen offset:{j*2048+1024} STP")
    a("s_branch Lfin2")
def k2():
    a=Asm()
    stamp(a,0)
    a("""s_cmp_ge_u32 s2, 256
    s_cbranch_scc1 Lend2
    s_load_dwordx2 s[4:5], s[0:1], 40
    s_load_dwordx2 s[6:7], s[0:1], 64
    v_lshrrev_b32 v2, 6, v0
    v_and_b32 v1, 63, v0
    v_and_b32 v0, 255, v0
    v_readfirstlane_b32 s3, v2
    s_bfe_u32 s20, s2, 0x10002
    s_lshl_b32 s20, s20, 1
    s_bfe_u32 s28, s2, 0x10005
    s_add_u32 s20, s20, s28
    s_lshr_b32 s21, s2, 6
    s_and_b32 s28, s2, 3
    s_lshl_b32 s28, s28, 2
    s_bfe_u32 s29, s2, 0x20003
    s_add_u32 s28, s28, s29
    s_lshl_b32 s23, s28, 2
    s_mul_i32 s30, s21, 7
    s_add_u32 s30, s30, 1
    s_lshr_b32 s30, s30, 1
    s_and_b32 s22, s3, 3
    s_cmp_lt_u32 s3, 4
    s_waitcnt lgkmcnt(0)
    s_cbranch_scc1 Lg2
    s_cmp_lt_u32 s3, 8
    s_cbranch_scc1 Ll2
    s_cmp_ge_u32 s2, 225
    s_cbranch_scc1 Lend2""")
    fft(a)
    a("s_barrier\ns_barrier\ns_branch Lfin2")
    a("Ll2:"); load2(a)
    a("Lg2:"); gemm2(a)
    a("Lfin2:"); flush(a,1,6,3)
    a("Lend2:\ns_endpgm")
    return a.text()
```

```python
from common import *
import os
from k1 import swap23
K3_LDS=114688+9216; FB=57344
def k3():
    a=Asm()
    stamp(a,0)
    a("""s_cmp_ge_u32 s2, 224
    s_cbranch_scc1 Lend3
    s_load_dwordx2 s[4:5], s[0:1], 0
    s_load_dwordx2 s[6:7], s[0:1], 64
    s_load_dwordx2 s[20:21], s[0:1], 48
    v_lshrrev_b32 v2, 6, v0
    v_and_b32 v1, 63, v0
    v_readfirstlane_b32 s3, v2
    s_lshr_b32 s28, s2, 3
    s_and_b32 s30, s2, 3
    s_lshl_b32 s30, s30, 3
    s_and_b32 s29, s2, 4
    s_add_u32 s30, s30, s29
    s_and_b32 s29, s28, 3
    s_add_u32 s30, s30, s29
    s_lshr_b32 s31, s28, 2
    s_and_b32 s32, s3, 1
    s_lshr_b32 s33, s3, 1
    s_cmp_lt_u32 s3, 4
    s_cbranch_scc1 Lc3""")
    tab_srd(a,12,'k3')
    a("""s_setprio 3
    s_and_b32 s22, s3, 3
    v_lshrrev_b32 v8, 3, v1
    v_and_b32 v9, 7, v1
    v_lshrrev_b32 v10, 4, v1
    v_xor_b32 v11, v9, v10
    v_mul_u32_u24 v12, 896, v8
    v_lshl_add_u32 v12, v11, 4, v12
    v_xor_b32 v13, 64, v12
    v_and_b32 v10, 1, v10
    v_lshlrev_b32 v10, 2, v10
    v_xor_b32 v9, v9, v10
    v_lshlrev_b32 v14, 12, v8
    v_lshl_add_u32 v14, v9, 4, v14
    s_lshl_b32 s36, s22, 16
    s_lshl_b32 s28, s30, 7
    s_add_u32 s36, s36, s28
    s_lshl_b32 s37, s31, 2
    s_add_u32 s37, s37, s22
    s_mul_i32 s37, s37, 14336
    s_lshl_b32 s38, s22, 11
    s_waitcnt lgkmcnt(0)""")
    srd(a,16,6,YT_OFF,YT_SZ)
    def dma(c):
        a(f"""s_add_u32 m0, s38, {c*8192}
        s_add_u32 s28, s36, {c*262144}
        buffer_load_dwordx4 v14, s[16:19], s28 offen lds
        s_add_u32 m0, s38, {c*8192+1024}
        s_add_u32 s28, s36, {c*262144+32768}
        buffer_load_dwordx4 v14, s[16:19], s28 offen lds
        s_add_u32 m0, s38, {FB+c*8192}
        s_add_u32 s28, s37, {c*128}
        buffer_load_dwordx4 v12, s[12:15], s28 offen lds
        s_add_u32 m0, s38, {FB+c*8192+1024}
        s_add_u32 s28, s37, {c*128+7168}
        buffer_load_dwordx4 v13, s[12:15], s28 offen lds""")
    LA=int(os.environ.get('LA','4'))
    a("s_barrier")
    for c in range(LA): dma(c)
    for i in range(7):
        if i>0 and i+LA-1<7: dma(i+LA-1)
        a(f"s_waitcnt vmcnt({4*min(LA-1,6-i)})")
        if i in (0,1,3,5): stamp(a,{0:1,1:2,3:3,5:4}[i])
        a("s_barrier")
    a("s_barrier\ns_branch Lfin3\nLc3:")
    a("""s_lshl_b32 s34, s30, 1
    s_add_u32 s34, s34, s32
    s_mul_i32 s34, s34, 28
    s_lshl_b32 s28, s31, 1
    s_add_u32 s28, s28, s33
    s_lshl_b32 s29, s28, 1
    s_add_u32 s34, s34, s29
    s_lshl_b32 s34, s34, 10
    s_lshl_b32 s35, s28, 6
    s_lshl_b32 s28, s32, 10
    s_add_u32 s28, s28, s30
    s_mul_i32 s28, s28, 896
    s_add_u32 s35, s35, s28
    v_lshlrev_b32 v2, 4, v1
    v_and_b32 v5, 31, v1
    v_lshrrev_b32 v6, 5, v1
    v_mul_u32_u24 v3, 28672, v5
    v_lshl_add_u32 v3, v6, 4, v3
    s_waitcnt lgkmcnt(0)""")
    srd(a,8,6,P_OFF,P_SZ); srd(a,24,4,0,0x1C0000)
    a("s_mov_b32 s22, 0x1C0000\ns_mov_b32 s23, 0x20000")
    for ks in range(4):
        for u in range(2): a(f"buffer_load_dwordx4 v[{32+8*ks+4*u}:{35+8*ks+4*u}], v2, s[8:11], s34 offen offset:{u*1024}")
        if ks<3: a(f"s_add_u32 s34, s34, {64*28*1024}")
    for u in range(2): a(f"buffer_load_dwordx4 v[{64+4*u}:{67+4*u}], v3, s[24:27], s35 offen offset:{u*32}")
    a("s_barrier")
    a("""v_mul_u32_u24 v21, 144, v5
    v_lshl_add_u32 v21, v6, 4, v21
    s_mul_i32 s28, s32, 4608
    s_lshl_b32 s29, s33, 6
    s_add_u32 s28, s28, s29
    s_add_u32 s28, s28, 114688
    v_add_u32 v21, s28, v21
    v_lshrrev_b32 v8, 3, v1
    v_and_b32 v9, 7, v1
    v_lshlrev_b32 v9, 4, v9
    v_mul_u32_u24 v22, 144, v8
    s_mul_i32 s28, s3, 2304
    s_add_u32 s28, s28, 114688
    v_add3_u32 v22, v22, v9, s28
    v_mul_u32_u24 v23, 28672, v8
    v_add_u32 v23, v23, v9
    s_lshl_b32 s28, s3, 9
    s_add_u32 s28, s28, s30
    s_mul_i32 s28, s28, 896
    s_lshl_b32 s29, s31, 7
    s_add_u32 s36, s28, s29
    s_add_u32 s37, s36, 229376""")
    swap23(a,5,5,7)
    a(f"""s_lshl_b32 s28, s33, 12
    s_add_u32 s28, s28, {FB}
    v_bfe_u32 v7, v5, 1, 3
    v_lshlrev_b32 v5, 7, v5
    v_add_u32 v5, s28, v5""")
    for e in range(4): a(f"v_add_u32 v8, {2*e}, v6\nv_xor_b32 v8, v8, v7\nv_lshl_add_u32 v{16+e}, v8, 4, v5")
    a("""v_bfe_u32 v8, v1, 2, 2
    v_lshl_add_u32 v9, v6, 3, v8
    v_lshlrev_b32 v9, 7, v9
    v_lshrrev_b32 v8, 1, v8
    v_xor_b32 v8, s32, v8
    v_lshl_add_u32 v9, v8, 6, v9
    v_bfe_u32 v8, v1, 4, 1
    v_lshl_add_u32 v9, v8, 5, v9
    v_and_b32 v8, 3, v1
    v_lshl_add_u32 v20, v8, 3, v9""")
    a(f"s_mov_b32 s28, 0xffff0000\ns_mov_b32 s29, {hex(f32(-1.4426950408889634))}")
    stamp(a,1); a("s_waitcnt vmcnt(2)"); stamp(a,2)
    for j in range(8):
        for ks in range(4): a(f"v_lshlrev_b32 v{96+2*ks}, 16, v{32+8*ks+j}\nv_and_b32 v{97+2*ks}, s28, v{32+8*ks+j}")
        G=80+2*j
        a(f"""v_pk_add_f32 v[96:97], v[96:97], v[98:99]
        v_pk_add_f32 v[100:101], v[100:101], v[102:103]
        v_pk_add_f32 v[96:97], v[96:97], v[100:101]
        v_cvt_pk_bf16_f32 v98, v96, v97
        v_lshlrev_b32 v96, 16, v98
        v_and_b32 v97, s28, v98
        v_mul_f32 v98, s29, v96
        v_mul_f32 v99, s29, v97
        v_exp_f32 v98, v98
        v_exp_f32 v99, v99
        s_nop 0
        v_pk_add_f32 v[98:99], v[98:99], 1.0 op_sel_hi:[1,0]
        v_rcp_f32 v98, v98
        v_rcp_f32 v99, v99
        s_nop 0
        v_pk_mul_f32 v[96:97], v[96:97], v[98:99]
        v_cvt_pk_bf16_f32 v98, v96, v97
        v_lshlrev_b32 v{G}, 16, v98
        v_and_b32 v{G+1}, s28, v98""")
    def reads(s):
        b=s%3; F=32+8*b; Y=36+8*b
        return [f"ds_read_b128 v[{F}:{F+3}], v{16+(s&3)} offset:{(s>>2)*8192}",
                f"ds_read_b64_tr_b16 v[{Y}:{Y+1}], v20 offset:{s*2048}",
                f"ds_read_b64_tr_b16 v[{Y+2}:{Y+3}], v20 offset:{s*2048+512}"]
    def need(s):
        if s<28:
            if s%4==0: a("s_barrier")
            for x in reads(s): a(x)
    a("s_waitcnt vmcnt(0)")
    for j in range(8): a(f"v_lshlrev_b32 v{96+2*j}, 16, v{64+j}\nv_and_b32 v{97+2*j}, s28, v{64+j}")
    stamp(a,3)
    need(0); stamp(a,4); need(1)
    for s in range(28):
        b=s%3; F=32+8*b; Y=36+8*b
        need(s+2)
        a(f"s_waitcnt lgkmcnt({3*min(2,27-s)})")
        a(f"v_mfma_f32_32x32x16_bf16 v[112:127], v[{F}:{F+3}], v[{Y}:{Y+3}], "+("0" if s==0 else "v[112:127]"))
    stamp(a,5)
    a("s_nop 7\ns_nop 7")
    for j in range(8): a(f"v_cvt_pk_bf16_f32 v{32+j}, v{112+2*j}, v{113+2*j}")
    for j in range(8): a(f"v_lshlrev_b32 v{112+2*j}, 16, v{32+j}\nv_and_b32 v{113+2*j}, s28, v{32+j}")
    for j in range(8): a(f"v_pk_mul_f32 v[{112+2*j}:{113+2*j}], v[{112+2*j}:{113+2*j}], v[{80+2*j}:{81+2*j}]")
    for j in range(8): a(f"v_cvt_pk_bf16_f32 v{32+j}, v{112+2*j}, v{113+2*j}")
    for j in range(8): a(f"v_lshlrev_b32 v{112+2*j}, 16, v{32+j}\nv_and_b32 v{113+2*j}, s28, v{32+j}")
    for j in range(8): a(f"v_pk_add_f32 v[{112+2*j}:{113+2*j}], v[{112+2*j}:{113+2*j}], v[{96+2*j}:{97+2*j}]")
    for j in range(8): a(f"v_cvt_pk_bf16_f32 v{32+j}, v{112+2*j}, v{113+2*j}")
    a("""ds_write_b128 v21, v[32:35]
    ds_write_b128 v21, v[36:39] offset:32
    s_waitcnt lgkmcnt(0)
    s_barrier
    ds_read_b128 v[32:35], v22
    ds_read_b128 v[36:39], v22 offset:1152
    s_waitcnt lgkmcnt(1)
    buffer_store_dwordx4 v[32:35], v23, s[20:23], s36 offen STO
    s_waitcnt lgkmcnt(0)
    buffer_store_dwordx4 v[36:39], v23, s[20:23], s37 offen STO""")
    a("Lfin3:"); flush(a,2,6,3)
    a("Lend3:\ns_endpgm")
    return a.text()
```

```python
from common import *
import os
ST=36864; CSP=147456; CSF=152576; RST=153216; K1_LDS=154752
def swap23(a, d, s, t):
    a(f"v_lshrrev_b32 v{t}, 1, v{s}\nv_xor_b32 v{t}, v{t}, v{s}\nv_and_b32 v{t}, 4, v{t}\nv_mul_u32_u24 v{t}, 3, v{t}\nv_xor_b32 v{d}, v{s}, v{t}")
def tr_addr(a, d, perm):
    a(f"""v_lshrrev_b32 v{d}, 5, v1
    v_bfe_u32 v17, v1, 2, 2
    v_lshl_add_u32 v{d}, v{d}, 3, v17
    v_lshlrev_b32 v{d}, 6, v{d}
    v_bfe_u32 v17, v1, 4, 1
    v_and_b32 v18, 3, v1
    v_lshl_add_u32 v17, v17, 2, v18
    v_lshlrev_b32 v17, 2, v17""")
    if perm: swap23(a,17,17,18)
    a(f"v_lshl_add_u32 v{d}, v17, 1, v{d}")
def a_addr(a, d, perm, sbase):
    a("v_and_b32 v5, 31, v1")
    if perm: swap23(a,5,5,6)
    a(f"v_lshrrev_b32 v6, 5, v1\nv_bfe_u32 v7, v5, 1, 3\nv_lshlrev_b32 v5, 7, v5\nv_add_u32 v5, s{sbase}, v5")
    for e in range(4): a(f"v_add_u32 v17, {2*e}, v6\nv_xor_b32 v17, v17, v7\nv_lshl_add_u32 v{d+e}, v17, 4, v5")
def pref(a):
    if os.environ.get('NOPF'): return
    a("""s_load_dwordx2 s[12:13], s[0:1], 40
    s_mov_b32 s14, 1605632
    s_lshr_b32 s28, s2, 3
    s_lshl_b32 s28, s28, 2
    s_add_u32 s28, s28, s22
    s_mul_i32 s28, s28, 6272
    s_bitcmp1_b32 s2, 2
    s_cselect_b32 s29, 802816, 0
    s_add_u32 s28, s28, s29
    v_lshlrev_b32 v2, 7, v1
    v_cmp_gt_u32 vcc, 49, v1
    s_and_b64 exec, exec, vcc
    s_waitcnt lgkmcnt(0)
    buffer_load_dword v3, v2, s[12:15], s28 offen
    s_barrier
    s_barrier
    s_barrier
    s_waitcnt vmcnt(0)""")
def loader(a):
    a(f"""v_lshrrev_b32 v2, 3, v1
    v_mul_u32_u24 v2, 28672, v2
    v_and_b32 v3, 7, v1
    v_lshrrev_b32 v4, 4, v1
    v_xor_b32 v3, v3, v4
    v_lshl_add_u32 v2, v3, 4, v2
    v_xor_b32 v3, 64, v2
    s_and_b32 s28, s22, 1
    s_lshl_b32 s28, s28, 10
    s_lshr_b32 s29, s22, 1
    s_add_u32 s28, s28, s29
    s_lshl_b32 s29, s20, 1
    s_add_u32 s28, s28, s29
    s_mul_i32 s24, s28, 896
    v_lshrrev_b32 v4, 2, v1
    v_mul_lo_u32 v4, s23, v4
    v_and_b32 v5, 3, v1
    v_lshl_add_u32 v4, v5, 4, v4
    s_mul_i32 s25, s22, s23
    s_lshl_b32 s25, s25, 4
    s_mul_i32 s28, s21, 320
    s_add_u32 s25, s25, s28
    s_lshl_b32 s26, s22, 12
    s_mul_i32 s29, s22, 5120
    s_add_u32 s29, s29, 16384
    s_lshl_b32 s23, s23, 6
    s_mov_b32 s27, 0""")
    RM=int(os.environ.get('RM','7')); RS=int(os.environ.get('RS','1'))
    a(f"""s_and_b32 s28, s20, 3
    s_lshl_b32 s28, s28, 1
    s_lshr_b32 s30, s2, 5
    s_add_u32 s30, s28, s30
    s_mul_i32 s28, s30, {(255+RM)//RM}
    s_lshr_b32 s28, s28, 8
    s_mul_i32 s28, s28, {RM}
    s_sub_u32 s30, s30, s28
    s_mul_i32 s30, s30, {RS}
    s_lshl_b32 s28, s30, 7
    s_add_u32 s24, s24, s28
    s_mul_i32 s28, s30, s23
    s_add_u32 s25, s25, s28
    s_mul_i32 s31, s23, 7""")
    def dma():
        for i in range(4): a(f"s_add_u32 m0, s26, {i*1024}\ns_add_u32 s28, s24, {i*8*28672}\nbuffer_load_dwordx4 v{2+(i&1)}, s[8:11], s28 offen lds")
        for b in range(5): a(f"s_add_u32 m0, s29, {b*1024}\ns_add_u32 s28, s25, {b*64}\nbuffer_load_dwordx4 v4, s[12:15], s28 offen lds")
        a(f"""s_add_u32 s27, s27, 1
        s_add_u32 s24, s24, 128
        s_add_u32 s25, s25, s23
        s_add_u32 s30, s30, 1
        s_cmp_eq_u32 s30, 7
        s_cselect_b32 s28, 896, 0
        s_cselect_b32 s32, s31, 0
        s_sub_u32 s24, s24, s28
        s_sub_u32 s25, s25, s32
        s_and_b32 s28, s27, 3
        s_cselect_b32 s28, s38, s39
        s_add_u32 s26, s26, s28
        s_add_u32 s29, s29, s28""")
    if os.environ.get('PRI'): a("s_setprio 3")
    dma(); dma(); a("s_waitcnt vmcnt(9)"); stamp(a,1); a("s_barrier")
    if os.environ.get('D2'):
        for i in range(1,7):
            if i<6: dma()
            a(f"s_waitcnt vmcnt({9 if i<6 else 0})")
            if i in (1,2,3,5): stamp(a,{0:1,1:2,2:3,3:4,5:5}[i])
            a("s_barrier")
    else:
        dma()
        for i in range(1,7):
            if i<5: dma()
            a(f"s_waitcnt vmcnt({min(18,9*(6-i))})")
            if i in (1,2,3,5): stamp(a,{0:1,1:2,2:3,3:4,5:5}[i])
            a("s_barrier")
    pref(a)
    a("s_branch Lfin1")
def stats(a):
    a("s_lshl_b32 s28, s22, 12"); a_addr(a,8,False,28); tr_addr(a,12,False)
    a("s_mul_i32 s31, s22, 5120\ns_add_u32 s31, s31, 16384\nv_add_u32 v12, s31, v12\nv_mov_b32 v79, 0x3f803f80")
    for r in range(72,79): a(f"v_mov_b32 v{r}, 0")
    a("s_mov_b32 s41, 0xffff0000")
    def dots(o):
        if os.environ.get('NODOT'): return
        if os.environ.get('PLAIN'):
            for j in range(16):
                t=60+2*(j&1)
                a(f"v_lshlrev_b32 v{t}, 16, v{o+j}\nv_and_b32 v{t+1}, s41, v{o+j}\nv_add_f32 v72, v72, v{t}\nv_fmac_f32 v73, v{t}, v{t}\nv_add_f32 v70, v70, v{t+1}\nv_fmac_f32 v71, v{t+1}, v{t+1}")
            for j in range(4):
                for b in range(5):
                    t=60+2*(b&1); r=o+16+4*b+j
                    a(f"v_lshlrev_b32 v{t}, 16, v{r}\nv_and_b32 v{t+1}, s41, v{r}\nv_add_f32 v{74+b}, v{74+b}, v{t}\nv_add_f32 v{64+b}, v{64+b}, v{t+1}")
            return
        for j in range(16): a(f"v_dot2c_f32_bf16 v72, v{o+j}, v79\nv_dot2c_f32_bf16 v73, v{o+j}, v{o+j}")
        for j in range(4):
            for b in range(5): a(f"v_dot2c_f32_bf16 v{74+b}, v{o+16+4*b+j}, v79")
    for c in range(7):
        o=24
        a("s_barrier")
        for e in range(4): a(f"ds_read_b128 v[{o+4*e}:{o+3+4*e}], v{8+e}")
        for b in range(5): a(f"ds_read_b64_tr_b16 v[{o+16+4*b}:{o+17+4*b}], v12 offset:{b*1024}\nds_read_b64_tr_b16 v[{o+18+4*b}:{o+19+4*b}], v12 offset:{b*1024+256}")
        if c<6:
            for r in range(8,13): a(f"v_add_u32 v{r}, s{39 if c==3 else 38}, v{r}")
        a("s_waitcnt lgkmcnt(0)")
        dots(24)

    a(f"""v_lshrrev_b32 v6, 5, v1
    s_lshl_b32 s28, s22, 1
    v_add_u32 v6, s28, v6
    v_mul_u32_u24 v6, 640, v6
    v_and_b32 v5, 31, v1
    v_lshl_add_u32 v6, v5, 2, v6
    v_add_u32 v6, {CSP}, v6""")
    for b in range(5): a(f"ds_write_b32 v6, v{74+b} offset:{b*128}")
    a(f"""v_mov_b32 v20, v72
    v_mov_b32 v21, v73
    s_nop 1
    v_permlane32_swap_b32 v72, v20
    v_permlane32_swap_b32 v73, v21
    s_nop 1
    v_add_f32 v72, v72, v20
    v_add_f32 v73, v73, v21
    v_mul_f32 v72, {hex(f32(1/448))}, v72
    v_mul_f32 v73, {hex(f32(1/448))}, v73
    v_fma_f32 v73, -v72, v72, v73
    v_max_f32 v73, 0, v73
    v_cvt_pk_bf16_f32 v72, v72, v73
    v_and_b32 v73, 0xffff0000, v72
    v_lshlrev_b32 v72, 16, v72
    v_add_f32 v73, {hex(f32(1e-5))}, v73
    v_cvt_pk_bf16_f32 v73, v73, v73
    v_and_b32 v73, 0xffff0000, v73
    v_sqrt_f32 v73, v73
    s_waitcnt lgkmcnt(0)
    s_barrier
    v_cvt_pk_bf16_f32 v73, v73, v73
    v_and_b32 v73, 0xffff0000, v73
    v_rcp_f32 v76, v73
    v_and_b32 v6, 255, v0
    v_lshlrev_b32 v6, 2, v6
    v_add_u32 v7, {CSP}, v6""")
    for i in range(8): a(f"ds_read_b32 v{24+i}, v7 offset:{i*640}")
    a(f"""v_mul_f32 v77, v76, v72
    s_mul_i32 s28, s22, 384
    s_add_u32 s28, s28, {RST}
    v_lshl_add_u32 v5, v5, 2, s28
    ds_write_b32 v5, v76
    ds_write_b32 v5, v77 offset:128
    ds_write_b32 v5, v72 offset:256
    s_waitcnt lgkmcnt(3)
    v_add_f32 v24, v24, v25
    v_add_f32 v26, v26, v27
    v_add_f32 v28, v28, v29
    v_add_f32 v30, v30, v31
    v_add_f32 v24, v24, v26
    v_add_f32 v28, v28, v30
    v_add_f32 v24, v24, v28
    v_cmp_gt_u32 vcc, 640, v6
    s_and_saveexec_b64 s[36:37], vcc
    v_add_u32 v7, {CSF}, v6
    ds_write_b32 v7, v24
    s_mov_b64 exec, s[36:37]
    s_waitcnt vmcnt(0) lgkmcnt(0)
    s_barrier
    s_barrier
    s_branch Lfin1""")
def gemm(a, isF):
    T='F' if isF else 'W'
    srd(a,16,6,X1_OFF if isF else H_OFF,X1_SZ if isF else H_SZ)
    a("s_lshl_b32 s28, s22, 12"); a_addr(a,8,isF,28); tr_addr(a,12,not isF)
    a("v_add_u32 v12, 16384, v12")
    for r in range(80,160): a(f"v_mov_b32 v{r}, 0")
    def reads(t):
        bf=t&1; A=24+4*bf; B=32+20*bf
        g=[f"ds_read_b128 v[{A}:{A+3}], v{8+t}"]
        for b in range(5):
            g.append(f"ds_read_b64_tr_b16 v[{B+4*b}:{B+4*b+1}], v12 offset:{t*5120+b*1024}")
            g.append(f"ds_read_b64_tr_b16 v[{B+4*b+2}:{B+4*b+3}], v12 offset:{t*5120+b*1024+256}")
        return [] if os.environ.get('NORD') else g
    stamp(a,1)
    a("s_mov_b32 s30, 0\ns_barrier")
    stamp(a,2)
    if os.environ.get('MB'): a("s_memtime s[44:45]\ns_waitcnt lgkmcnt(0)")
    for x in reads(0): a(x)
    a(f"Lloop{T}:")
    for t in range(4):
        bf=t&1; A=24+4*bf; B=32+20*bf
        if t<3:
            a("s_waitcnt lgkmcnt(0)"); fill=reads(t+1)
        else:
            a("s_add_u32 s30, s30, 1\ns_and_b32 s28, s30, 3\ns_cselect_b32 s28, s38, s39\nv_add_u32 v8, s28, v8\nv_add_u32 v12, s28, v12")
            a("s_waitcnt lgkmcnt(0)\ns_barrier")
            fill=reads(0)+[f"v_add_u32 v{r}, s28, v{r}" for r in (9,10,11)]
        n=len(fill); k=0
        for b in range(5):
            D=80+16*b
            if isF: a(f"v_mfma_f32_32x32x16_bf16 v[{D}:{D+15}], v[{A}:{A+3}], v[{B+4*b}:{B+4*b+3}], v[{D}:{D+15}]")
            else:   a(f"v_mfma_f32_32x32x16_bf16 v[{D}:{D+15}], v[{B+4*b}:{B+4*b+3}], v[{A}:{A+3}], v[{D}:{D+15}]")
            if os.environ.get('CDOT'):
                for q in range(3 if b<3 else 2): a(f"v_dot2c_f32_bf16 v{72+q}, v{A+q}, v{A+q}")
            e=min(n,3*(b+1)+(1 if b>=3 else 0)*9)
            while k<e: a(fill[k]); k+=1
    a(f"s_cmp_lt_u32 s30, 7\ns_cbranch_scc1 Lloop{T}")
    stamp(a,3)
    if os.environ.get('MB'):
        a(f"""s_memtime s[46:47]
        s_load_dwordx2 s[48:49], s[0:1], 56
        s_waitcnt lgkmcnt(0)
        s_sub_u32 s46, s46, s44
        s_getreg_b32 s47, hwreg(HW_REG_HW_ID)
        s_mov_b32 s50, 256
        s_mov_b32 s51, 0x20000
        s_cmp_gt_u32 s2, 1
        s_cbranch_scc1 Lmb{T}
        s_lshl_b32 s44, s2, 2
        s_add_u32 s44, s44, s22
        s_lshl_b32 s44, s44, 3
        v_mov_b32 v2, s46
        v_mov_b32 v3, s47
        v_mov_b32 v4, 0
        buffer_store_dwordx2 v[2:3], v4, s[48:51], s44 offen
        Lmb{T}:""")
    a(f"v_lshrrev_b32 v6, 5, v1\nv_and_b32 v5, 31, v1\ns_mul_i32 s29, s22, 384\ns_add_u32 s29, s29, {RST}")
    if not isF:
        a(f"v_lshlrev_b32 v6, 5, v6\nv_add_u32 v6, {CSF}, v6\nv_lshlrev_b32 v7, 4, v1\nv_lshl_add_u32 v5, v5, 2, s29")
        a("s_lshl_b32 s28, s20, 2\ns_add_u32 s28, s28, s22\ns_mul_i32 s28, s28, 112\ns_mul_i32 s30, s21, 10\ns_add_u32 s28, s28, s30\ns_lshl_b32 s28, s28, 10")
        a("s_waitcnt lgkmcnt(0)\ns_barrier\ns_barrier\nds_read_b32 v76, v5\nds_read_b32 v72, v5 offset:256")
        def csr(b):
            C=24+16*(b&1)
            for u in range(2):
                for q in range(2): a(f"ds_read_b128 v[{C+8*u+4*q}:{C+8*u+4*q+3}], v6 offset:{b*128+u*64+q*16}")
        csr(0)
        for b in range(5):
            C=24+16*(b&1); D=80+16*b
            if b<4: csr(b+1); a("s_waitcnt lgkmcnt(4)")
            else: a("s_waitcnt lgkmcnt(0)")
            for j in range(0,16,2): a(f"v_pk_fma_f32 v[{D+j}:{D+j+1}], v[{C+j}:{C+j+1}], v[72:73], v[{D+j}:{D+j+1}] op_sel_hi:[1,0,1] neg_lo:[0,1,0] neg_hi:[0,1,0]")
            for j in range(0,16,2): a(f"v_pk_mul_f32 v[{D+j}:{D+j+1}], v[{D+j}:{D+j+1}], v[76:77] op_sel_hi:[1,0]")
            for j in range(8): a(f"v_cvt_pk_bf16_f32 v{D+j}, v{D+2*j}, v{D+2*j+1}")
            for j in range(8): a(f"v_pk_max_i16 v{D+j}, v{D+j}, 0")
            a(f"buffer_store_dwordx4 v[{D}:{D+3}], v7, s[16:19], s28 offen offset:{(b&1)*2048} STH")
            a(f"buffer_store_dwordx4 v[{D+4}:{D+7}], v7, s[16:19], s28 offen offset:{(b&1)*2048+1024} STH")
            if b&1: a("s_add_u32 s28, s28, 4096")
            if b==0: a("s_cmp_eq_u32 s21, 11\ns_cbranch_scc1 Lfin1")
    else:
        a(f"""v_lshl_add_u32 v4, v6, 5, s29
        v_lshlrev_b32 v3, 2, v5
        v_add_u32 v3, {CSF}, v3
        v_mul_u32_u24 v7, 272, v5
        v_lshl_add_u32 v7, v6, 4, v7
        s_lshl_b32 s30, s22, 6
        v_add_u32 v7, s30, v7
        v_lshrrev_b32 v8, 4, v1
        v_and_b32 v9, 15, v1
        v_lshlrev_b32 v9, 4, v9
        v_mul_u32_u24 v10, 4352, v8
        v_add_u32 v10, v10, v9
        v_mul_u32_u24 v8, 272, v8
        s_mul_i32 s30, s22, 10880
        v_add3_u32 v8, v8, v9, s30
        s_mul_i32 s28, s21, 696320
        s_lshl_b32 s30, s20, 8
        s_add_u32 s28, s28, s30
        s_mul_i32 s30, s22, 174080
        s_add_u32 s28, s28, s30
        s_waitcnt lgkmcnt(0)
        s_barrier""")
        for z in range(2):
            for u in range(2):
                for q in range(2): a(f"ds_read_b128 v[{24+16*z+8*u+4*q}:{24+16*z+8*u+4*q+3}], v4 offset:{z*128+u*64+q*16}")
        for b in range(5): a(f"ds_read_b32 v{60+2*b}, v3 offset:{b*128}")
        a("s_waitcnt lgkmcnt(0)")
        for b in range(5):
            D=80+16*b
            for j in range(0,16,2): a(f"v_pk_mul_f32 v[{D+j}:{D+j+1}], v[{D+j}:{D+j+1}], v[{24+j}:{25+j}]")
            for j in range(0,16,2): a(f"v_pk_fma_f32 v[{D+j}:{D+j+1}], v[{40+j}:{41+j}], v[{60+2*b}:{61+2*b}], v[{D+j}:{D+j+1}] op_sel_hi:[1,0,1] neg_lo:[0,1,0] neg_hi:[0,1,0]")
            for j in range(8): a(f"v_cvt_pk_bf16_f32 v{D+j}, v{D+2*j}, v{D+2*j+1}")
            a(f"ds_write_b128 v7, v[{D}:{D+3}] offset:{b*8704}\nds_write_b128 v7, v[{D+4}:{D+7}] offset:{b*8704+32}")
        a("s_waitcnt lgkmcnt(0)\ns_barrier")
        for q in range(10): a(f"ds_read_b128 v[{80+4*q}:{83+4*q}], v8 offset:{q*1088}")
        for q in range(10): a(f"s_waitcnt lgkmcnt({9-q})\nbuffer_store_dwordx4 v[{80+4*q}:{83+4*q}], v10, s[16:19], s28 offen STX\ns_add_u32 s28, s28, 17408")
    a("s_branch Lfin1")
def wtrans(a):
    a("s_load_dwordx4 s[24:27], s[0:1], 8\ns_waitcnt lgkmcnt(0)")
    srd(a,8,24,0,921600); srd(a,12,26,0,921600); srd(a,16,6,WT_OFF,WT_SZ)
    a("""s_lshr_b32 s24, s20, 2
    s_and_b32 s25, s20, 3
    v_lshlrev_b32 v2, 4, v1
    s_cmp_ge_u32 s3, 8
    s_cbranch_scc1 Lwt2
    s_lshr_b32 s28, s3, 2
    s_lshl_b32 s28, s28, 4
    s_and_b32 s29, s3, 3
    s_add_u32 s28, s28, s29
    s_lshl_b32 s29, s25, 2
    s_add_u32 s28, s28, s29
    s_lshl_b32 s28, s28, 2
    s_add_u32 s28, s28, s24
    s_mul_i32 s28, s28, 7200
    s_lshl_b32 s30, s3, 13
    s_add_u32 s29, s28, 4096""")
    for ri in range(2):
        for hf in range(2):
            a(f"s_add_u32 m0, s30, {ri*65536+hf*4096}\ns_nop 0")
            for q in range(4): a(f"buffer_load_dwordx4 v2, s[{8+4*ri}:{11+4*ri}], s{28+hf} offen offset:{q*1024} lds")
    a("""Lwt2:
    v_and_b32 v3, 15, v1
    v_lshrrev_b32 v4, 4, v1
    s_lshl_b32 s28, s3, 2
    v_add_u32 v4, s28, v4
    v_lshrrev_b32 v5, 1, v3
    v_mul_u32_u24 v5, 450, v5
    v_lshl_add_u32 v5, v4, 1, v5
    v_and_b32 v6, 1, v1
    v_lshl_add_u32 v5, v6, 15, v5
    v_add_u32 v6, 65536, v5
    v_lshlrev_b32 v7, 13, v4
    v_lshl_add_u32 v7, v3, 4, v7
    s_lshl_b32 s29, s24, 2
    s_add_u32 s29, s29, s25
    s_lshl_b32 s29, s29, 9
    s_mov_b32 s30, 0
    s_waitcnt vmcnt(0)
    s_barrier
    Lwt3:""")
    for j in range(8): a(f"ds_read_u16 v{16+j}, v5 offset:{(j&3)*8192+(j>>2)*3600}\nds_read_u16 v{24+j}, v6 offset:{(j&3)*8192+(j>>2)*3600}")
    a("""v_add_u32 v5, 96, v5
    v_add_u32 v6, 96, v6
    s_add_u32 s30, s30, 1
    s_waitcnt lgkmcnt(0)""")
    for j in range(8): a(f"v_lshl_or_b32 v{8+j}, v{24+j}, 16, v{16+j}")
    a("""buffer_store_dwordx4 v[8:11], v7, s[16:19], s29 offen STW
    buffer_store_dwordx4 v[12:15], v7, s[16:19], s29 offen offset:256 STW
    s_add_u32 s29, s29, 393216
    s_cmp_lt_u32 s30, 5
    s_cbranch_scc1 Lwt3""")
def k1():
    a=Asm()
    stamp(a,0)
    a(f"""s_cmp_ge_u32 s2, 256
    s_cbranch_scc1 Lend1
    s_load_dwordx2 s[8:9], s[0:1], 0
    s_load_dwordx2 s[12:13], s[0:1], 32
    s_load_dwordx2 s[6:7], s[0:1], 64
    v_lshrrev_b32 v2, 6, v0
    v_and_b32 v1, 63, v0
    v_readfirstlane_b32 s3, v2
    s_lshr_b32 s28, s2, 3
    s_and_b32 s20, s2, 3
    s_lshl_b32 s20, s20, 2
    s_and_b32 s29, s28, 3
    s_add_u32 s20, s20, s29
    s_lshr_b32 s21, s28, 2
    s_bfe_u32 s29, s2, 0x10002
    s_mul_i32 s30, s29, 6
    s_lshl_b32 s29, s29, 1
    s_add_u32 s29, s29, 6
    s_cmp_lt_u32 s21, 6
    s_cselect_b32 s29, s30, s29
    s_add_u32 s21, s21, s29
    s_mov_b32 s10, 0x1C0000
    s_mov_b32 s11, 0x20000
    s_mov_b32 s14, {448*3584}
    s_mov_b32 s15, 0x20000
    s_mov_b32 s38, {ST}
    s_mov_b32 s39, {-3*ST}
    s_and_b32 s22, s3, 3
    s_mov_b32 s23, 3584
    s_waitcnt lgkmcnt(0)
    s_cmp_eq_u32 s21, 15
    s_cbranch_scc1 Lwt
    s_cmp_ge_u32 s21, 12
    s_cbranch_scc1 LisF
    s_cmp_ge_u32 s3, 4
    s_cbranch_scc0 LgW
    s_branch Lload
    LisF:
    s_sub_u32 s21, s21, 12
    s_cmp_ge_u32 s3, 4
    s_cbranch_scc0 LgF
    s_mov_b32 s23, 896""")
    tab_srd(a,12,'k1')
    a("Lload:\ns_cmp_ge_u32 s3, 8\ns_cbranch_scc1 Lstat"); loader(a)
    a("Lstat:"); stats(a)
    a("LgW:"); gemm(a,False)
    a("LgF:"); gemm(a,True)
    a("Lwt:"); wtrans(a)
    a("Lfin1:"); flush(a,0,6,3)
    a("Lend1:\ns_endpgm")
    return a.text()
```

```python
from common import *
import os
from k1 import swap23
K3_LDS=114688+9216; FB=57344
def k3():
    a=Asm()
    stamp(a,0)
    a("""s_cmp_ge_u32 s2, 224
    s_cbranch_scc1 Lend3
    s_load_dwordx2 s[4:5], s[0:1], 0
    s_load_dwordx2 s[6:7], s[0:1], 64
    s_load_dwordx2 s[20:21], s[0:1], 48
    v_lshrrev_b32 v2, 6, v0
    v_and_b32 v1, 63, v0
    v_readfirstlane_b32 s3, v2
    s_lshr_b32 s28, s2, 3
    s_and_b32 s30, s2, 3
    s_lshl_b32 s30, s30, 3
    s_and_b32 s29, s2, 4
    s_add_u32 s30, s30, s29
    s_and_b32 s29, s28, 3
    s_add_u32 s30, s30, s29
    s_lshr_b32 s31, s28, 2
    s_and_b32 s32, s3, 1
    s_lshr_b32 s33, s3, 1
    s_cmp_lt_u32 s3, 4
    s_cbranch_scc1 Lc3""")
    tab_srd(a,12,'k3')
    a("""s_setprio 3
    s_and_b32 s22, s3, 3
    v_lshrrev_b32 v8, 3, v1
    v_and_b32 v9, 7, v1
    v_lshrrev_b32 v10, 4, v1
    v_xor_b32 v11, v9, v10
    v_mul_u32_u24 v12, 896, v8
    v_lshl_add_u32 v12, v11, 4, v12
    v_xor_b32 v13, 64, v12
    v_and_b32 v10, 1, v10
    v_lshlrev_b32 v10, 2, v10
    v_xor_b32 v9, v9, v10
    v_mul_u32_u24 v14, 4352, v8
    v_lshl_add_u32 v14, v9, 4, v14
    s_mul_i32 s36, s22, 69632
    s_lshl_b32 s28, s30, 7
    s_add_u32 s36, s36, s28
    s_lshl_b32 s37, s31, 2
    s_add_u32 s37, s37, s22
    s_mul_i32 s37, s37, 14336
    s_lshl_b32 s38, s22, 11
    s_waitcnt lgkmcnt(0)""")
    srd(a,16,6,YT_OFF,YT_SZ)
    def dma(c):
        a(f"""s_add_u32 m0, s38, {c*8192}
        s_add_u32 s28, s36, {c*64*4352}
        buffer_load_dwordx4 v14, s[16:19], s28 offen lds
        s_add_u32 m0, s38, {c*8192+1024}
        s_add_u32 s28, s36, {c*64*4352+8*4352}
        buffer_load_dwordx4 v14, s[16:19], s28 offen lds
        s_add_u32 m0, s38, {FB+c*8192}
        s_add_u32 s28, s37, {c*128}
        buffer_load_dwordx4 v12, s[12:15], s28 offen lds
        s_add_u32 m0, s38, {FB+c*8192+1024}
        s_add_u32 s28, s37, {c*128+7168}
        buffer_load_dwordx4 v13, s[12:15], s28 offen lds""")
    LA=int(os.environ.get('LA','4'))
    a("s_barrier")
    for c in range(LA): dma(c)
    for i in range(7):
        if i>0 and i+LA-1<7: dma(i+LA-1)
        a(f"s_waitcnt vmcnt({4*min(LA-1,6-i)})")
        if i in (0,1,3,5): stamp(a,{0:1,1:2,3:3,5:4}[i])
        a("s_barrier")
    a("s_barrier\ns_branch Lfin3\nLc3:")
    a("""s_lshl_b32 s34, s30, 1
    s_add_u32 s34, s34, s32
    s_mul_i32 s34, s34, 28
    s_lshl_b32 s28, s31, 1
    s_add_u32 s28, s28, s33
    s_lshl_b32 s29, s28, 1
    s_add_u32 s34, s34, s29
    s_lshl_b32 s34, s34, 10
    s_lshl_b32 s35, s28, 6
    s_lshl_b32 s28, s32, 10
    s_add_u32 s28, s28, s30
    s_mul_i32 s28, s28, 896
    s_add_u32 s35, s35, s28
    v_lshlrev_b32 v2, 4, v1
    v_and_b32 v5, 31, v1
    v_lshrrev_b32 v6, 5, v1
    v_mul_u32_u24 v3, 28672, v5
    v_lshl_add_u32 v3, v6, 4, v3
    s_waitcnt lgkmcnt(0)""")
    srd(a,8,6,P_OFF,P_SZ); srd(a,24,4,0,0x1C0000)
    a("s_mov_b32 s22, 0x1C0000\ns_mov_b32 s23, 0x20000")
    for ks in range(4):
        for u in range(2): a(f"buffer_load_dwordx4 v[{32+8*ks+4*u}:{35+8*ks+4*u}], v2, s[8:11], s34 offen offset:{u*1024}")
        if ks<3: a(f"s_add_u32 s34, s34, {64*28*1024}")
    for u in range(2): a(f"buffer_load_dwordx4 v[{64+4*u}:{67+4*u}], v3, s[24:27], s35 offen offset:{u*32}")
    a("s_barrier")
    a("""v_mul_u32_u24 v21, 144, v5
    v_lshl_add_u32 v21, v6, 4, v21
    s_mul_i32 s28, s32, 4608
    s_lshl_b32 s29, s33, 6
    s_add_u32 s28, s28, s29
    s_add_u32 s28, s28, 114688
    v_add_u32 v21, s28, v21
    v_lshrrev_b32 v8, 3, v1
    v_and_b32 v9, 7, v1
    v_lshlrev_b32 v9, 4, v9
    v_mul_u32_u24 v22, 144, v8
    s_mul_i32 s28, s3, 2304
    s_add_u32 s28, s28, 114688
    v_add3_u32 v22, v22, v9, s28
    v_mul_u32_u24 v23, 28672, v8
    v_add_u32 v23, v23, v9
    s_lshl_b32 s28, s3, 9
    s_add_u32 s28, s28, s30
    s_mul_i32 s28, s28, 896
    s_lshl_b32 s29, s31, 7
    s_add_u32 s36, s28, s29
    s_add_u32 s37, s36, 229376""")
    swap23(a,5,5,7)
    a(f"""s_lshl_b32 s28, s33, 12
    s_add_u32 s28, s28, {FB}
    v_bfe_u32 v7, v5, 1, 3
    v_lshlrev_b32 v5, 7, v5
    v_add_u32 v5, s28, v5""")
    for e in range(4): a(f"v_add_u32 v8, {2*e}, v6\nv_xor_b32 v8, v8, v7\nv_lshl_add_u32 v{16+e}, v8, 4, v5")
    a("""v_bfe_u32 v8, v1, 2, 2
    v_lshl_add_u32 v9, v6, 3, v8
    v_lshlrev_b32 v9, 7, v9
    v_lshrrev_b32 v8, 1, v8
    v_xor_b32 v8, s32, v8
    v_lshl_add_u32 v9, v8, 6, v9
    v_bfe_u32 v8, v1, 4, 1
    v_lshl_add_u32 v9, v8, 5, v9
    v_and_b32 v8, 3, v1
    v_lshl_add_u32 v20, v8, 3, v9""")
    a(f"s_mov_b32 s28, 0xffff0000\ns_mov_b32 s29, {hex(f32(-1.4426950408889634))}")
    stamp(a,1); a("s_waitcnt vmcnt(2)"); stamp(a,2)
    for j in range(8):
        for ks in range(4): a(f"v_lshlrev_b32 v{96+2*ks}, 16, v{32+8*ks+j}\nv_and_b32 v{97+2*ks}, s28, v{32+8*ks+j}")
        G=80+2*j
        a(f"""v_pk_add_f32 v[96:97], v[96:97], v[98:99]
        v_pk_add_f32 v[100:101], v[100:101], v[102:103]
        v_pk_add_f32 v[96:97], v[96:97], v[100:101]
        v_cvt_pk_bf16_f32 v98, v96, v97
        v_lshlrev_b32 v96, 16, v98
        v_and_b32 v97, s28, v98
        v_mul_f32 v98, s29, v96
        v_mul_f32 v99, s29, v97
        v_exp_f32 v98, v98
        v_exp_f32 v99, v99
        s_nop 0
        v_pk_add_f32 v[98:99], v[98:99], 1.0 op_sel_hi:[1,0]
        v_rcp_f32 v98, v98
        v_rcp_f32 v99, v99
        s_nop 0
        v_pk_mul_f32 v[96:97], v[96:97], v[98:99]
        v_cvt_pk_bf16_f32 v98, v96, v97
        v_lshlrev_b32 v{G}, 16, v98
        v_and_b32 v{G+1}, s28, v98""")
    def reads(s):
        b=s%3; F=32+8*b; Y=36+8*b
        return [f"ds_read_b128 v[{F}:{F+3}], v{16+(s&3)} offset:{(s>>2)*8192}",
                f"ds_read_b64_tr_b16 v[{Y}:{Y+1}], v20 offset:{s*2048}",
                f"ds_read_b64_tr_b16 v[{Y+2}:{Y+3}], v20 offset:{s*2048+512}"]
    def need(s):
        if s<28:
            if s%4==0: a("s_barrier")
            for x in reads(s): a(x)
    a("s_waitcnt vmcnt(0)")
    for j in range(8): a(f"v_lshlrev_b32 v{96+2*j}, 16, v{64+j}\nv_and_b32 v{97+2*j}, s28, v{64+j}")
    stamp(a,3)
    need(0); stamp(a,4); need(1)
    for s in range(28):
        b=s%3; F=32+8*b; Y=36+8*b
        need(s+2)
        a(f"s_waitcnt lgkmcnt({3*min(2,27-s)})")
        a(f"v_mfma_f32_32x32x16_bf16 v[112:127], v[{F}:{F+3}], v[{Y}:{Y+3}], "+("0" if s==0 else "v[112:127]"))
    stamp(a,5)
    a("s_nop 7\ns_nop 7")
    for j in range(8): a(f"v_cvt_pk_bf16_f32 v{32+j}, v{112+2*j}, v{113+2*j}")
    for j in range(8): a(f"v_lshlrev_b32 v{112+2*j}, 16, v{32+j}\nv_and_b32 v{113+2*j}, s28, v{32+j}")
    for j in range(8): a(f"v_pk_mul_f32 v[{112+2*j}:{113+2*j}], v[{112+2*j}:{113+2*j}], v[{80+2*j}:{81+2*j}]")
    for j in range(8): a(f"v_cvt_pk_bf16_f32 v{32+j}, v{112+2*j}, v{113+2*j}")
    for j in range(8): a(f"v_lshlrev_b32 v{112+2*j}, 16, v{32+j}\nv_and_b32 v{113+2*j}, s28, v{32+j}")
    for j in range(8): a(f"v_pk_add_f32 v[{112+2*j}:{113+2*j}], v[{112+2*j}:{113+2*j}], v[{96+2*j}:{97+2*j}]")
    for j in range(8): a(f"v_cvt_pk_bf16_f32 v{32+j}, v{112+2*j}, v{113+2*j}")
    a("""ds_write_b128 v21, v[32:35]
    ds_write_b128 v21, v[36:39] offset:32
    s_waitcnt lgkmcnt(0)
    s_barrier
    ds_read_b128 v[32:35], v22
    ds_read_b128 v[36:39], v22 offset:1152
    s_waitcnt lgkmcnt(1)
    buffer_store_dwordx4 v[32:35], v23, s[20:23], s36 offen STO
    s_waitcnt lgkmcnt(0)
    buffer_store_dwordx4 v[36:39], v23, s[20:23], s37 offen STO""")
    a("Lfin3:"); flush(a,2,6,3)
    a("Lend3:\ns_endpgm")
    return a.text()
```

```python
from common import *
import os
ST=36864; CSP=147456; CSF=152576; RST=153216; K1_LDS=154752
def swap23(a, d, s, t):
    a(f"v_lshrrev_b32 v{t}, 1, v{s}\nv_xor_b32 v{t}, v{t}, v{s}\nv_and_b32 v{t}, 4, v{t}\nv_mul_u32_u24 v{t}, 3, v{t}\nv_xor_b32 v{d}, v{s}, v{t}")
def tr_addr(a, d, perm):
    a(f"""v_lshrrev_b32 v{d}, 5, v1
    v_bfe_u32 v17, v1, 2, 2
    v_lshl_add_u32 v{d}, v{d}, 3, v17
    v_lshlrev_b32 v{d}, 6, v{d}
    v_bfe_u32 v17, v1, 4, 1
    v_and_b32 v18, 3, v1
    v_lshl_add_u32 v17, v17, 2, v18
    v_lshlrev_b32 v17, 2, v17""")
    if perm: swap23(a,17,17,18)
    a(f"v_lshl_add_u32 v{d}, v17, 1, v{d}")
def a_addr(a, d, perm, sbase):
    a("v_and_b32 v5, 31, v1")
    if perm: swap23(a,5,5,6)
    a(f"v_lshrrev_b32 v6, 5, v1\nv_bfe_u32 v7, v5, 1, 3\nv_lshlrev_b32 v5, 7, v5\nv_add_u32 v5, s{sbase}, v5")
    for e in range(4): a(f"v_add_u32 v17, {2*e}, v6\nv_xor_b32 v17, v17, v7\nv_lshl_add_u32 v{d+e}, v17, 4, v5")
def pref(a,tag='l',nb=3):
    a(f"""s_load_dwordx2 s[44:45], s[0:1], 40
    s_mov_b32 s46, 1605632
    s_mov_b32 s47, 0x20000
    s_lshr_b32 s28, s2, 3
    s_lshl_b32 s28, s28, 2
    s_add_u32 s28, s28, s22
    s_and_b32 s33, s28, 3
    s_mul_i32 s28, s28, 6272
    s_bitcmp1_b32 s2, 2
    s_cselect_b32 s29, 802816, 0
    s_add_u32 s28, s28, s29
    v_lshlrev_b32 v40, 7, v1
    s_getpc_b64 s[48:49]
    Lpf{tag}:
    s_add_u32 s48, s48, k2_kernel-Lpf{tag}
    s_addc_u32 s49, s49, 0
    s_mov_b32 s50, ftab-k2_kernel
    s_mov_b32 s51, 0x20000
    s_lshl_b32 s33, s33, 13
    buffer_load_dword v42, v40, s[48:51], s33 offen
    v_cmp_gt_u32 vcc, 49, v1
    s_and_saveexec_b64 s[52:53], vcc
    s_waitcnt lgkmcnt(0)
    buffer_load_dword v41, v40, s[44:47], s28 offen
    s_mov_b64 exec, s[52:53]""")
    for q in range(nb): a("s_barrier")
    if nb: a("s_waitcnt vmcnt(0)")
def loader(a):
    a(f"""v_lshrrev_b32 v2, 3, v1
    v_mul_u32_u24 v2, 28672, v2
    v_and_b32 v3, 7, v1
    v_lshrrev_b32 v4, 4, v1
    v_xor_b32 v3, v3, v4
    v_lshl_add_u32 v2, v3, 4, v2
    v_xor_b32 v3, 64, v2
    s_and_b32 s28, s22, 1
    s_lshl_b32 s28, s28, 10
    s_lshr_b32 s29, s22, 1
    s_add_u32 s28, s28, s29
    s_lshl_b32 s29, s20, 1
    s_add_u32 s28, s28, s29
    s_mul_i32 s24, s28, 896
    v_lshrrev_b32 v4, 2, v1
    v_mul_lo_u32 v4, s23, v4
    v_and_b32 v5, 3, v1
    v_lshl_add_u32 v4, v5, 4, v4
    s_mul_i32 s25, s22, s23
    s_lshl_b32 s25, s25, 4
    s_mul_i32 s28, s21, 320
    s_add_u32 s25, s25, s28
    s_lshl_b32 s26, s22, 12
    s_mul_i32 s29, s22, 5120
    s_add_u32 s29, s29, 16384
    s_lshl_b32 s23, s23, 6
    s_mov_b32 s27, 0""")
    RM=int(os.environ.get('RM','7')); RS=int(os.environ.get('RS','1'))
    a(f"""s_and_b32 s28, s20, 3
    s_lshl_b32 s28, s28, 1
    s_lshr_b32 s30, s2, 5
    s_add_u32 s30, s28, s30
    s_mul_i32 s28, s30, {(255+RM)//RM}
    s_lshr_b32 s28, s28, 8
    s_mul_i32 s28, s28, {RM}
    s_sub_u32 s30, s30, s28
    s_mul_i32 s30, s30, {RS}
    s_lshl_b32 s28, s30, 7
    s_add_u32 s24, s24, s28
    s_mul_i32 s28, s30, s23
    s_add_u32 s25, s25, s28
    s_mul_i32 s31, s23, 7""")
    def dma():
        for i in range(4): a(f"s_add_u32 m0, s26, {i*1024}\ns_add_u32 s28, s24, {i*8*28672}\nbuffer_load_dwordx4 v{2+(i&1)}, s[8:11], s28 offen lds")
        for b in range(5): a(f"s_add_u32 m0, s29, {b*1024}\ns_add_u32 s28, s25, {b*64}\nbuffer_load_dwordx4 v4, s[12:15], s28 offen lds")
        a(f"""s_add_u32 s27, s27, 1
        s_add_u32 s24, s24, 128
        s_add_u32 s25, s25, s23
        s_add_u32 s30, s30, 1
        s_cmp_eq_u32 s30, 7
        s_cselect_b32 s28, 896, 0
        s_cselect_b32 s32, s31, 0
        s_sub_u32 s24, s24, s28
        s_sub_u32 s25, s25, s32
        s_and_b32 s28, s27, 3
        s_cselect_b32 s28, s38, s39
        s_add_u32 s26, s26, s28
        s_add_u32 s29, s29, s28""")
    U=int(os.environ.get('U','2'))
    for q in range(U): dma()
    a(f"s_waitcnt vmcnt({9*(U-1)})"); stamp(a,1); a("s_barrier")
    n=U
    for i in range(1,7):
        while n<min(7,i+3): dma(); n+=1
        a(f"s_waitcnt vmcnt({9*(n-1-i)})")
        if i in (1,2,3,5): stamp(a,{0:1,1:2,2:3,3:4,5:5}[i])
        a("s_barrier")
    pref(a)
    a("s_branch Lfin1")
def stats(a):
    a("s_lshl_b32 s28, s22, 12"); a_addr(a,8,False,28); tr_addr(a,12,False)
    a("s_mul_i32 s31, s22, 5120\ns_add_u32 s31, s31, 16384\nv_add_u32 v12, s31, v12\nv_mov_b32 v79, 0x3f803f80")
    for r in range(72,79): a(f"v_mov_b32 v{r}, 0")
    a("s_mov_b32 s41, 0xffff0000")
    def dots(o):
        if os.environ.get('NODOT'): return
        if os.environ.get('PLAIN'):
            for j in range(16):
                t=60+2*(j&1)
                a(f"v_lshlrev_b32 v{t}, 16, v{o+j}\nv_and_b32 v{t+1}, s41, v{o+j}\nv_add_f32 v72, v72, v{t}\nv_fmac_f32 v73, v{t}, v{t}\nv_add_f32 v70, v70, v{t+1}\nv_fmac_f32 v71, v{t+1}, v{t+1}")
            for j in range(4):
                for b in range(5):
                    t=60+2*(b&1); r=o+16+4*b+j
                    a(f"v_lshlrev_b32 v{t}, 16, v{r}\nv_and_b32 v{t+1}, s41, v{r}\nv_add_f32 v{74+b}, v{74+b}, v{t}\nv_add_f32 v{64+b}, v{64+b}, v{t+1}")
            return
        for j in range(16): a(f"v_dot2c_f32_bf16 v72, v{o+j}, v79\nv_dot2c_f32_bf16 v73, v{o+j}, v{o+j}")
        for j in range(4):
            for b in range(5): a(f"v_dot2c_f32_bf16 v{74+b}, v{o+16+4*b+j}, v79")
    for c in range(7):
        o=24
        a("s_barrier")
        for e in range(4): a(f"ds_read_b128 v[{o+4*e}:{o+3+4*e}], v{8+e}")
        for b in range(5): a(f"ds_read_b64_tr_b16 v[{o+16+4*b}:{o+17+4*b}], v12 offset:{b*1024}\nds_read_b64_tr_b16 v[{o+18+4*b}:{o+19+4*b}], v12 offset:{b*1024+256}")
        if c<6:
            for r in range(8,13): a(f"v_add_u32 v{r}, s{39 if c==3 else 38}, v{r}")
        a("s_waitcnt lgkmcnt(0)")
        dots(24)

    a(f"""v_lshrrev_b32 v6, 5, v1
    s_lshl_b32 s28, s22, 1
    v_add_u32 v6, s28, v6
    v_mul_u32_u24 v6, 640, v6
    v_and_b32 v5, 31, v1
    v_lshl_add_u32 v6, v5, 2, v6
    v_add_u32 v6, {CSP}, v6""")
    for b in range(5): a(f"ds_write_b32 v6, v{74+b} offset:{b*128}")
    a(f"""v_mov_b32 v20, v72
    v_mov_b32 v21, v73
    s_nop 1
    v_permlane32_swap_b32 v72, v20
    v_permlane32_swap_b32 v73, v21
    s_nop 1
    v_add_f32 v72, v72, v20
    v_add_f32 v73, v73, v21
    v_mul_f32 v72, {hex(f32(1/448))}, v72
    v_mul_f32 v73, {hex(f32(1/448))}, v73
    v_fma_f32 v73, -v72, v72, v73
    v_max_f32 v73, 0, v73
    v_cvt_pk_bf16_f32 v72, v72, v73
    v_and_b32 v73, 0xffff0000, v72
    v_lshlrev_b32 v72, 16, v72
    v_add_f32 v73, {hex(f32(1e-5))}, v73
    v_cvt_pk_bf16_f32 v73, v73, v73
    v_and_b32 v73, 0xffff0000, v73
    v_sqrt_f32 v73, v73
    s_waitcnt lgkmcnt(0)
    s_barrier
    v_cvt_pk_bf16_f32 v73, v73, v73
    v_and_b32 v73, 0xffff0000, v73
    v_rcp_f32 v76, v73
    v_and_b32 v6, 255, v0
    v_lshlrev_b32 v6, 2, v6
    v_add_u32 v7, {CSP}, v6""")
    for i in range(8): a(f"ds_read_b32 v{24+i}, v7 offset:{i*640}")
    a(f"""v_mul_f32 v77, v76, v72
    s_mul_i32 s28, s22, 384
    s_add_u32 s28, s28, {RST}
    v_lshl_add_u32 v5, v5, 2, s28
    ds_write_b32 v5, v76
    ds_write_b32 v5, v77 offset:128
    ds_write_b32 v5, v72 offset:256
    s_waitcnt lgkmcnt(3)
    v_add_f32 v24, v24, v25
    v_add_f32 v26, v26, v27
    v_add_f32 v28, v28, v29
    v_add_f32 v30, v30, v31
    v_add_f32 v24, v24, v26
    v_add_f32 v28, v28, v30
    v_add_f32 v24, v24, v28
    v_cmp_gt_u32 vcc, 640, v6
    s_and_saveexec_b64 s[36:37], vcc
    v_add_u32 v7, {CSF}, v6
    ds_write_b32 v7, v24
    s_mov_b64 exec, s[36:37]
    s_waitcnt vmcnt(0) lgkmcnt(0)
    s_barrier
    s_barrier
    s_branch Lfin1""")
def gemm(a, isF):
    T='F' if isF else 'W'
    srd(a,16,6,X1_OFF if isF else H_OFF,X1_SZ if isF else H_SZ)
    a("s_lshl_b32 s28, s22, 12"); a_addr(a,8,isF,28); tr_addr(a,12,not isF)
    a("v_add_u32 v12, 16384, v12")
    for r in range(80,160): a(f"v_mov_b32 v{r}, 0")
    def reads(t):
        bf=t&1; A=24+4*bf; B=32+20*bf
        g=[f"ds_read_b128 v[{A}:{A+3}], v{8+t}"]
        for b in range(5):
            g.append(f"ds_read_b64_tr_b16 v[{B+4*b}:{B+4*b+1}], v12 offset:{t*5120+b*1024}")
            g.append(f"ds_read_b64_tr_b16 v[{B+4*b+2}:{B+4*b+3}], v12 offset:{t*5120+b*1024+256}")
        return [] if os.environ.get('NORD') else g
    stamp(a,1)
    a("s_mov_b32 s30, 0\ns_barrier")
    stamp(a,2)
    if os.environ.get('MB'): a("s_memtime s[44:45]\ns_waitcnt lgkmcnt(0)")
    for x in reads(0): a(x)
    a(f"Lloop{T}:")
    for t in range(4):
        bf=t&1; A=24+4*bf; B=32+20*bf
        if t<3:
            a("s_waitcnt lgkmcnt(0)"); fill=reads(t+1)
        else:
            a("s_add_u32 s30, s30, 1\ns_and_b32 s28, s30, 3\ns_cselect_b32 s28, s38, s39\nv_add_u32 v8, s28, v8\nv_add_u32 v12, s28, v12")
            a("s_waitcnt lgkmcnt(0)\ns_barrier")
            fill=reads(0)+[f"v_add_u32 v{r}, s28, v{r}" for r in (9,10,11)]
        n=len(fill); k=0
        for b in range(5):
            D=80+16*b
            if isF: a(f"v_mfma_f32_32x32x16_bf16 v[{D}:{D+15}], v[{A}:{A+3}], v[{B+4*b}:{B+4*b+3}], v[{D}:{D+15}]")
            else:   a(f"v_mfma_f32_32x32x16_bf16 v[{D}:{D+15}], v[{B+4*b}:{B+4*b+3}], v[{A}:{A+3}], v[{D}:{D+15}]")
            if os.environ.get('CDOT'):
                for q in range(3 if b<3 else 2): a(f"v_dot2c_f32_bf16 v{72+q}, v{A+q}, v{A+q}")
            e=min(n,3*(b+1)+(1 if b>=3 else 0)*9)
            while k<e: a(fill[k]); k+=1
    a(f"s_cmp_lt_u32 s30, 7\ns_cbranch_scc1 Lloop{T}")
    stamp(a,3)
    if os.environ.get('MB'):
        a(f"""s_memtime s[46:47]
        s_load_dwordx2 s[48:49], s[0:1], 56
        s_waitcnt lgkmcnt(0)
        s_sub_u32 s46, s46, s44
        s_getreg_b32 s47, hwreg(HW_REG_HW_ID)
        s_mov_b32 s50, 256
        s_mov_b32 s51, 0x20000
        s_cmp_gt_u32 s2, 1
        s_cbranch_scc1 Lmb{T}
        s_lshl_b32 s44, s2, 2
        s_add_u32 s44, s44, s22
        s_lshl_b32 s44, s44, 3
        v_mov_b32 v2, s46
        v_mov_b32 v3, s47
        v_mov_b32 v4, 0
        buffer_store_dwordx2 v[2:3], v4, s[48:51], s44 offen
        Lmb{T}:""")
    a(f"v_lshrrev_b32 v6, 5, v1\nv_and_b32 v5, 31, v1\ns_mul_i32 s29, s22, 384\ns_add_u32 s29, s29, {RST}")
    if not isF:
        a(f"v_lshlrev_b32 v6, 5, v6\nv_add_u32 v6, {CSF}, v6\nv_lshlrev_b32 v7, 4, v1\nv_lshl_add_u32 v5, v5, 2, s29")
        a("s_lshl_b32 s28, s20, 2\ns_add_u32 s28, s28, s22\ns_mul_i32 s28, s28, 112\ns_mul_i32 s30, s21, 10\ns_add_u32 s28, s28, s30\ns_lshl_b32 s28, s28, 10")
        a("s_waitcnt lgkmcnt(0)\ns_barrier\ns_barrier\nds_read_b32 v76, v5\nds_read_b32 v72, v5 offset:256")
        def csr(b):
            C=24+16*(b&1)
            for u in range(2):
                for q in range(2): a(f"ds_read_b128 v[{C+8*u+4*q}:{C+8*u+4*q+3}], v6 offset:{b*128+u*64+q*16}")
        csr(0)
        for b in range(5):
            C=24+16*(b&1); D=80+16*b
            if b<4: csr(b+1); a("s_waitcnt lgkmcnt(4)")
            else: a("s_waitcnt lgkmcnt(0)")
            for j in range(0,16,2): a(f"v_pk_fma_f32 v[{D+j}:{D+j+1}], v[{C+j}:{C+j+1}], v[72:73], v[{D+j}:{D+j+1}] op_sel_hi:[1,0,1] neg_lo:[0,1,0] neg_hi:[0,1,0]")
            for j in range(0,16,2): a(f"v_pk_mul_f32 v[{D+j}:{D+j+1}], v[{D+j}:{D+j+1}], v[76:77] op_sel_hi:[1,0]")
            for j in range(8): a(f"v_cvt_pk_bf16_f32 v{D+j}, v{D+2*j}, v{D+2*j+1}")
            for j in range(8): a(f"v_pk_max_i16 v{D+j}, v{D+j}, 0")
            a(f"buffer_store_dwordx4 v[{D}:{D+3}], v7, s[16:19], s28 offen offset:{(b&1)*2048} STH")
            a(f"buffer_store_dwordx4 v[{D+4}:{D+7}], v7, s[16:19], s28 offen offset:{(b&1)*2048+1024} STH")
            if b&1: a("s_add_u32 s28, s28, 4096")
            if b==0: a("s_cmp_eq_u32 s21, 11\ns_cbranch_scc1 Lfin1")
    else:
        a(f"""v_lshl_add_u32 v4, v6, 5, s29
        v_lshlrev_b32 v3, 2, v5
        v_add_u32 v3, {CSF}, v3
        v_mul_u32_u24 v7, 272, v5
        v_lshl_add_u32 v7, v6, 4, v7
        s_lshl_b32 s30, s22, 6
        v_add_u32 v7, s30, v7
        v_lshrrev_b32 v8, 4, v1
        v_and_b32 v9, 15, v1
        v_lshlrev_b32 v9, 4, v9
        v_mul_u32_u24 v10, 4352, v8
        v_add_u32 v10, v10, v9
        v_mul_u32_u24 v8, 272, v8
        s_mul_i32 s30, s22, 10880
        v_add3_u32 v8, v8, v9, s30
        s_mul_i32 s28, s21, 696320
        s_lshl_b32 s30, s20, 8
        s_add_u32 s28, s28, s30
        s_mul_i32 s30, s22, 174080
        s_add_u32 s28, s28, s30
        s_waitcnt lgkmcnt(0)
        s_barrier""")
        for z in range(2):
            for u in range(2):
                for q in range(2): a(f"ds_read_b128 v[{24+16*z+8*u+4*q}:{24+16*z+8*u+4*q+3}], v4 offset:{z*128+u*64+q*16}")
        for b in range(5): a(f"ds_read_b32 v{60+2*b}, v3 offset:{b*128}")
        a("s_waitcnt lgkmcnt(0)")
        for b in range(5):
            D=80+16*b
            for j in range(0,16,2): a(f"v_pk_mul_f32 v[{D+j}:{D+j+1}], v[{D+j}:{D+j+1}], v[{24+j}:{25+j}]")
            for j in range(0,16,2): a(f"v_pk_fma_f32 v[{D+j}:{D+j+1}], v[{40+j}:{41+j}], v[{60+2*b}:{61+2*b}], v[{D+j}:{D+j+1}] op_sel_hi:[1,0,1] neg_lo:[0,1,0] neg_hi:[0,1,0]")
            for j in range(8): a(f"v_cvt_pk_bf16_f32 v{D+j}, v{D+2*j}, v{D+2*j+1}")
            a(f"ds_write_b128 v7, v[{D}:{D+3}] offset:{b*8704}\nds_write_b128 v7, v[{D+4}:{D+7}] offset:{b*8704+32}")
        a("s_waitcnt lgkmcnt(0)\ns_barrier")
        for q in range(10): a(f"ds_read_b128 v[{80+4*q}:{83+4*q}], v8 offset:{q*1088}")
        for q in range(10): a(f"s_waitcnt lgkmcnt({9-q})\nbuffer_store_dwordx4 v[{80+4*q}:{83+4*q}], v10, s[16:19], s28 offen STX\ns_add_u32 s28, s28, 17408")
    a("s_branch Lfin1")
def wtrans(a):
    a("s_load_dwordx4 s[24:27], s[0:1], 8\ns_waitcnt lgkmcnt(0)")
    srd(a,8,24,0,921600); srd(a,12,26,0,921600); srd(a,16,6,WT_OFF,WT_SZ)
    a("""s_lshr_b32 s24, s20, 2
    s_and_b32 s25, s20, 3
    v_lshlrev_b32 v2, 4, v1
    s_cmp_ge_u32 s3, 8
    s_cbranch_scc0 Lwt1""")
    pref(a,'w',0)
    a("""s_branch Lwt2
    Lwt1:
    s_lshr_b32 s28, s3, 2
    s_lshl_b32 s28, s28, 4
    s_and_b32 s29, s3, 3
    s_add_u32 s28, s28, s29
    s_lshl_b32 s29, s25, 2
    s_add_u32 s28, s28, s29
    s_lshl_b32 s28, s28, 2
    s_add_u32 s28, s28, s24
    s_mul_i32 s28, s28, 7200
    s_lshl_b32 s30, s3, 13
    s_add_u32 s29, s28, 4096""")
    for ri in range(2):
        for hf in range(2):
            a(f"s_add_u32 m0, s30, {ri*65536+hf*4096}\ns_nop 0")
            for q in range(4): a(f"buffer_load_dwordx4 v2, s[{8+4*ri}:{11+4*ri}], s{28+hf} offen offset:{q*1024} lds")
    a("""Lwt2:
    v_and_b32 v3, 15, v1
    v_lshrrev_b32 v4, 4, v1
    s_lshl_b32 s28, s3, 2
    v_add_u32 v4, s28, v4
    v_lshrrev_b32 v5, 1, v3
    v_mul_u32_u24 v5, 450, v5
    v_lshl_add_u32 v5, v4, 1, v5
    v_and_b32 v6, 1, v1
    v_lshl_add_u32 v5, v6, 15, v5
    v_add_u32 v6, 65536, v5
    v_lshlrev_b32 v7, 13, v4
    v_lshl_add_u32 v7, v3, 4, v7
    s_lshl_b32 s29, s24, 2
    s_add_u32 s29, s29, s25
    s_lshl_b32 s29, s29, 9
    s_mov_b32 s30, 0
    s_waitcnt vmcnt(0)
    s_barrier
    Lwt3:""")
    for j in range(8): a(f"ds_read_u16 v{16+j}, v5 offset:{(j&3)*8192+(j>>2)*3600}\nds_read_u16 v{24+j}, v6 offset:{(j&3)*8192+(j>>2)*3600}")
    a("""v_add_u32 v5, 96, v5
    v_add_u32 v6, 96, v6
    s_add_u32 s30, s30, 1
    s_waitcnt lgkmcnt(0)""")
    for j in range(8): a(f"v_lshl_or_b32 v{8+j}, v{24+j}, 16, v{16+j}")
    a("""buffer_store_dwordx4 v[8:11], v7, s[16:19], s29 offen STW
    buffer_store_dwordx4 v[12:15], v7, s[16:19], s29 offen offset:256 STW
    s_add_u32 s29, s29, 393216
    s_cmp_lt_u32 s30, 5
    s_cbranch_scc1 Lwt3""")
def k1():
    a=Asm()
    stamp(a,0)
    a(f"""s_cmp_ge_u32 s2, 256
    s_cbranch_scc1 Lend1
    s_load_dwordx2 s[8:9], s[0:1], 0
    s_load_dwordx2 s[12:13], s[0:1], 32
    s_load_dwordx2 s[6:7], s[0:1], 64
    v_lshrrev_b32 v2, 6, v0
    v_and_b32 v1, 63, v0
    v_readfirstlane_b32 s3, v2
    s_lshr_b32 s28, s2, 3
    s_and_b32 s20, s2, 3
    s_lshl_b32 s20, s20, 2
    s_and_b32 s29, s28, 3
    s_add_u32 s20, s20, s29
    s_lshr_b32 s21, s28, 2
    s_bfe_u32 s29, s2, 0x10002
    s_mul_i32 s30, s29, 6
    s_lshl_b32 s29, s29, 1
    s_add_u32 s29, s29, 6
    s_cmp_lt_u32 s21, 6
    s_cselect_b32 s29, s30, s29
    s_add_u32 s21, s21, s29
    s_mov_b32 s10, 0x1C0000
    s_mov_b32 s11, 0x20000
    s_mov_b32 s14, {448*3584}
    s_mov_b32 s15, 0x20000
    s_mov_b32 s38, {ST}
    s_mov_b32 s39, {-3*ST}
    s_and_b32 s22, s3, 3
    s_mov_b32 s23, 3584
    s_waitcnt lgkmcnt(0)
    s_cmp_eq_u32 s21, 15
    s_cbranch_scc1 Lwt
    s_cmp_ge_u32 s21, 12
    s_cbranch_scc1 LisF
    s_cmp_ge_u32 s3, 4
    s_cbranch_scc0 LgW
    s_branch Lload
    LisF:
    s_sub_u32 s21, s21, 12
    s_cmp_ge_u32 s3, 4
    s_cbranch_scc0 LgF
    s_mov_b32 s23, 896""")
    tab_srd(a,12,'k1')
    a("Lload:\ns_cmp_ge_u32 s3, 8\ns_cbranch_scc1 Lstat"); loader(a)
    a("Lstat:"); stats(a)
    a("LgW:"); gemm(a,False)
    a("LgF:"); gemm(a,True)
    a("Lwt:"); wtrans(a)
    a("Lfin1:"); flush(a,0,6,3)
    a("Lend1:\ns_endpgm")
    return a.text()
```

```python
from common import *
import os
ST=36864; CSP=147456; CSF=152576; RST=153216; K1_LDS=154752
def swap23(a, d, s, t):
    a(f"v_lshrrev_b32 v{t}, 1, v{s}\nv_xor_b32 v{t}, v{t}, v{s}\nv_and_b32 v{t}, 4, v{t}\nv_mul_u32_u24 v{t}, 3, v{t}\nv_xor_b32 v{d}, v{s}, v{t}")
def tr_addr(a, d, perm):
    a(f"""v_lshrrev_b32 v{d}, 5, v1
    v_bfe_u32 v17, v1, 2, 2
    v_lshl_add_u32 v{d}, v{d}, 3, v17
    v_lshlrev_b32 v{d}, 6, v{d}
    v_bfe_u32 v17, v1, 4, 1
    v_and_b32 v18, 3, v1
    v_lshl_add_u32 v17, v17, 2, v18
    v_lshlrev_b32 v17, 2, v17""")
    if perm: swap23(a,17,17,18)
    a(f"v_lshl_add_u32 v{d}, v17, 1, v{d}")
def a_addr(a, d, perm, sbase):
    a("v_and_b32 v5, 31, v1")
    if perm: swap23(a,5,5,6)
    a(f"v_lshrrev_b32 v6, 5, v1\nv_bfe_u32 v7, v5, 1, 3\nv_lshlrev_b32 v5, 7, v5\nv_add_u32 v5, s{sbase}, v5")
    for e in range(4): a(f"v_add_u32 v17, {2*e}, v6\nv_xor_b32 v17, v17, v7\nv_lshl_add_u32 v{d+e}, v17, 4, v5")
def pref(a,tag='l',nb=3):
    a(f"""s_load_dwordx2 s[44:45], s[0:1], 40
    s_mov_b32 s46, 1605632
    s_mov_b32 s47, 0x20000
    s_lshr_b32 s28, s2, 3
    s_lshl_b32 s28, s28, 2
    s_add_u32 s28, s28, s22
    s_and_b32 s33, s28, 3
    s_mul_i32 s28, s28, 6272
    s_bitcmp1_b32 s2, 2
    s_cselect_b32 s29, 802816, 0
    s_add_u32 s28, s28, s29
    v_lshlrev_b32 v40, 7, v1
    s_getpc_b64 s[48:49]
    Lpf{tag}:
    s_add_u32 s48, s48, k2_kernel-Lpf{tag}
    s_addc_u32 s49, s49, 0
    s_mov_b32 s50, ftab-k2_kernel
    s_mov_b32 s51, 0x20000
    s_lshl_b32 s33, s33, 13
    buffer_load_dword v42, v40, s[48:51], s33 offen
    v_cmp_gt_u32 vcc, 49, v1
    s_and_saveexec_b64 s[52:53], vcc
    s_waitcnt lgkmcnt(0)
    buffer_load_dword v41, v40, s[44:47], s28 offen
    s_mov_b64 exec, s[52:53]""")
    for q in range(nb): a("s_barrier")
    if nb: a("s_waitcnt vmcnt(0)")
def loader(a):
    a(f"""v_lshrrev_b32 v2, 3, v1
    v_mul_u32_u24 v2, 28672, v2
    v_and_b32 v3, 7, v1
    v_lshrrev_b32 v4, 4, v1
    v_xor_b32 v3, v3, v4
    v_lshl_add_u32 v2, v3, 4, v2
    v_xor_b32 v3, 64, v2
    s_and_b32 s28, s22, 1
    s_lshl_b32 s28, s28, 10
    s_lshr_b32 s29, s22, 1
    s_add_u32 s28, s28, s29
    s_lshl_b32 s29, s20, 1
    s_add_u32 s28, s28, s29
    s_mul_i32 s24, s28, 896
    v_lshrrev_b32 v4, 2, v1
    v_mul_lo_u32 v4, s23, v4
    v_and_b32 v5, 3, v1
    v_lshl_add_u32 v4, v5, 4, v4
    s_mul_i32 s25, s22, s23
    s_lshl_b32 s25, s25, 4
    s_mul_i32 s28, s21, 320
    s_add_u32 s25, s25, s28
    s_lshl_b32 s26, s22, 12
    s_mul_i32 s29, s22, 5120
    s_add_u32 s29, s29, 16384
    s_lshl_b32 s23, s23, 6
    s_mov_b32 s27, 0""")
    RM=int(os.environ.get('RM','7')); RS=int(os.environ.get('RS','1'))
    a(f"""s_and_b32 s28, s20, 3
    s_lshl_b32 s28, s28, 1
    s_lshr_b32 s30, s2, 5
    s_add_u32 s30, s28, s30
    s_mul_i32 s28, s30, {(255+RM)//RM}
    s_lshr_b32 s28, s28, 8
    s_mul_i32 s28, s28, {RM}
    s_sub_u32 s30, s30, s28
    s_mul_i32 s30, s30, {RS}
    s_lshl_b32 s28, s30, 7
    s_add_u32 s24, s24, s28
    s_mul_i32 s28, s30, s23
    s_add_u32 s25, s25, s28
    s_mul_i32 s31, s23, 7""")
    def dma():
        for i in range(4): a(f"s_add_u32 m0, s26, {i*1024}\ns_add_u32 s28, s24, {i*8*28672}\nbuffer_load_dwordx4 v{2+(i&1)}, s[8:11], s28 offen lds")
        for b in range(5): a(f"s_add_u32 m0, s29, {b*1024}\ns_add_u32 s28, s25, {b*64}\nbuffer_load_dwordx4 v4, s[12:15], s28 offen lds")
        a(f"""s_add_u32 s27, s27, 1
        s_add_u32 s24, s24, 128
        s_add_u32 s25, s25, s23
        s_add_u32 s30, s30, 1
        s_cmp_eq_u32 s30, 7
        s_cselect_b32 s28, 896, 0
        s_cselect_b32 s32, s31, 0
        s_sub_u32 s24, s24, s28
        s_sub_u32 s25, s25, s32
        s_and_b32 s28, s27, 3
        s_cselect_b32 s28, s38, s39
        s_add_u32 s26, s26, s28
        s_add_u32 s29, s29, s28""")
    U=int(os.environ.get('U','2'))
    for q in range(U): dma()
    a(f"s_waitcnt vmcnt({9*(U-1)})"); stamp(a,1); a("s_barrier")
    n=U
    for i in range(1,7):
        while n<min(7,i+3): dma(); n+=1
        a(f"s_waitcnt vmcnt({9*(n-1-i)})")
        if i in (1,2,3,5): stamp(a,{0:1,1:2,2:3,3:4,5:5}[i])
        a("s_barrier")
    pref(a)
    a("s_branch Lfin1")
def stats(a):
    a("s_lshl_b32 s28, s22, 12"); a_addr(a,8,False,28); tr_addr(a,12,False)
    a("s_mul_i32 s31, s22, 5120\ns_add_u32 s31, s31, 16384\nv_add_u32 v12, s31, v12\nv_mov_b32 v79, 0x3f803f80")
    for r in range(72,79): a(f"v_mov_b32 v{r}, 0")
    a("s_mov_b32 s41, 0xffff0000")
    def dots(o):
        if os.environ.get('NODOT'): return
        if os.environ.get('PLAIN'):
            for j in range(16):
                t=60+2*(j&1)
                a(f"v_lshlrev_b32 v{t}, 16, v{o+j}\nv_and_b32 v{t+1}, s41, v{o+j}\nv_add_f32 v72, v72, v{t}\nv_fmac_f32 v73, v{t}, v{t}\nv_add_f32 v70, v70, v{t+1}\nv_fmac_f32 v71, v{t+1}, v{t+1}")
            for j in range(4):
                for b in range(5):
                    t=60+2*(b&1); r=o+16+4*b+j
                    a(f"v_lshlrev_b32 v{t}, 16, v{r}\nv_and_b32 v{t+1}, s41, v{r}\nv_add_f32 v{74+b}, v{74+b}, v{t}\nv_add_f32 v{64+b}, v{64+b}, v{t+1}")
            return
        for j in range(16): a(f"v_dot2c_f32_bf16 v72, v{o+j}, v79\nv_dot2c_f32_bf16 v73, v{o+j}, v{o+j}")
        for j in range(4):
            for b in range(5): a(f"v_dot2c_f32_bf16 v{74+b}, v{o+16+4*b+j}, v79")
    for c in range(7):
        o=24
        a("s_barrier")
        for e in range(4): a(f"ds_read_b128 v[{o+4*e}:{o+3+4*e}], v{8+e}")
        for b in range(5): a(f"ds_read_b64_tr_b16 v[{o+16+4*b}:{o+17+4*b}], v12 offset:{b*1024}\nds_read_b64_tr_b16 v[{o+18+4*b}:{o+19+4*b}], v12 offset:{b*1024+256}")
        if c<6:
            for r in range(8,13): a(f"v_add_u32 v{r}, s{39 if c==3 else 38}, v{r}")
        a("s_waitcnt lgkmcnt(0)")
        dots(24)

    a(f"""v_lshrrev_b32 v6, 5, v1
    s_lshl_b32 s28, s22, 1
    v_add_u32 v6, s28, v6
    v_mul_u32_u24 v6, 640, v6
    v_and_b32 v5, 31, v1
    v_lshl_add_u32 v6, v5, 2, v6
    v_add_u32 v6, {CSP}, v6""")
    for b in range(5): a(f"ds_write_b32 v6, v{74+b} offset:{b*128}")
    a(f"""v_mov_b32 v20, v72
    v_mov_b32 v21, v73
    s_nop 1
    v_permlane32_swap_b32 v72, v20
    v_permlane32_swap_b32 v73, v21
    s_nop 1
    v_add_f32 v72, v72, v20
    v_add_f32 v73, v73, v21
    v_mul_f32 v72, {hex(f32(1/448))}, v72
    v_mul_f32 v73, {hex(f32(1/448))}, v73
    v_fma_f32 v73, -v72, v72, v73
    v_max_f32 v73, 0, v73
    v_cvt_pk_bf16_f32 v72, v72, v73
    v_and_b32 v73, 0xffff0000, v72
    v_lshlrev_b32 v72, 16, v72
    v_add_f32 v73, {hex(f32(1e-5))}, v73
    v_cvt_pk_bf16_f32 v73, v73, v73
    v_and_b32 v73, 0xffff0000, v73
    v_sqrt_f32 v73, v73
    s_waitcnt lgkmcnt(0)
    s_barrier
    v_cvt_pk_bf16_f32 v73, v73, v73
    v_and_b32 v73, 0xffff0000, v73
    v_rcp_f32 v76, v73
    v_and_b32 v6, 255, v0
    v_lshlrev_b32 v6, 2, v6
    v_add_u32 v7, {CSP}, v6""")
    for i in range(8): a(f"ds_read_b32 v{24+i}, v7 offset:{i*640}")
    a(f"""v_mul_f32 v77, v76, v72
    s_mul_i32 s28, s22, 384
    s_add_u32 s28, s28, {RST}
    v_lshl_add_u32 v5, v5, 2, s28
    ds_write_b32 v5, v76
    ds_write_b32 v5, v77 offset:128
    ds_write_b32 v5, v72 offset:256
    s_waitcnt lgkmcnt(3)
    v_add_f32 v24, v24, v25
    v_add_f32 v26, v26, v27
    v_add_f32 v28, v28, v29
    v_add_f32 v30, v30, v31
    v_add_f32 v24, v24, v26
    v_add_f32 v28, v28, v30
    v_add_f32 v24, v24, v28
    v_cmp_gt_u32 vcc, 640, v6
    s_and_saveexec_b64 s[36:37], vcc
    v_add_u32 v7, {CSF}, v6
    ds_write_b32 v7, v24
    s_mov_b64 exec, s[36:37]
    s_waitcnt vmcnt(0) lgkmcnt(0)
    s_barrier
    s_barrier
    s_branch Lfin1""")
def gemm(a, isF):
    T='F' if isF else 'W'
    if os.environ.get('CPF','1')=='1':
        a(f"""s_getpc_b64 s[48:49]
        Lcp{T}:
        s_sub_u32 s48, s48, Lcp{T}-k1_kernel
        s_subb_u32 s49, s49, 0
        s_mov_b32 s50, k2_kernel-k1_kernel
        s_mov_b32 s51, 0x20000
        s_lshl_b32 s33, s22, 13
        v_lshlrev_b32 v20, 7, v1
        buffer_load_dword v21, v20, s[48:51], s33 offen""")
    srd(a,16,6,X1_OFF if isF else H_OFF,X1_SZ if isF else H_SZ)
    a("s_lshl_b32 s28, s22, 12"); a_addr(a,8,isF,28); tr_addr(a,12,not isF)
    a("v_add_u32 v12, 16384, v12")
    for r in range(80,160): a(f"v_mov_b32 v{r}, 0")
    def reads(t):
        bf=t&1; A=24+4*bf; B=32+20*bf
        g=[f"ds_read_b128 v[{A}:{A+3}], v{8+t}"]
        for b in range(5):
            g.append(f"ds_read_b64_tr_b16 v[{B+4*b}:{B+4*b+1}], v12 offset:{t*5120+b*1024}")
            g.append(f"ds_read_b64_tr_b16 v[{B+4*b+2}:{B+4*b+3}], v12 offset:{t*5120+b*1024+256}")
        return [] if os.environ.get('NORD') else g
    stamp(a,1)
    a("s_mov_b32 s30, 0\ns_barrier")
    stamp(a,2)
    if os.environ.get('MB'): a("s_memtime s[44:45]\ns_waitcnt lgkmcnt(0)")
    for x in reads(0): a(x)
    a(f"Lloop{T}:")
    for t in range(4):
        bf=t&1; A=24+4*bf; B=32+20*bf
        if t<3:
            a("s_waitcnt lgkmcnt(0)"); fill=reads(t+1)
        else:
            a("s_add_u32 s30, s30, 1\ns_and_b32 s28, s30, 3\ns_cselect_b32 s28, s38, s39\nv_add_u32 v8, s28, v8\nv_add_u32 v12, s28, v12")
            a("s_waitcnt lgkmcnt(0)\ns_barrier")
            fill=reads(0)+[f"v_add_u32 v{r}, s28, v{r}" for r in (9,10,11)]
        n=len(fill); k=0
        for b in range(5):
            D=80+16*b
            if isF: a(f"v_mfma_f32_32x32x16_bf16 v[{D}:{D+15}], v[{A}:{A+3}], v[{B+4*b}:{B+4*b+3}], v[{D}:{D+15}]")
            else:   a(f"v_mfma_f32_32x32x16_bf16 v[{D}:{D+15}], v[{B+4*b}:{B+4*b+3}], v[{A}:{A+3}], v[{D}:{D+15}]")
            if os.environ.get('CDOT'):
                for q in range(3 if b<3 else 2): a(f"v_dot2c_f32_bf16 v{72+q}, v{A+q}, v{A+q}")
            e=min(n,3*(b+1)+(1 if b>=3 else 0)*9)
            while k<e: a(fill[k]); k+=1
    a(f"s_cmp_lt_u32 s30, 7\ns_cbranch_scc1 Lloop{T}\ns_waitcnt vmcnt(0)")
    stamp(a,3)
    if os.environ.get('MB'):
        a(f"""s_memtime s[46:47]
        s_load_dwordx2 s[48:49], s[0:1], 56
        s_waitcnt lgkmcnt(0)
        s_sub_u32 s46, s46, s44
        s_getreg_b32 s47, hwreg(HW_REG_HW_ID)
        s_mov_b32 s50, 256
        s_mov_b32 s51, 0x20000
        s_cmp_gt_u32 s2, 1
        s_cbranch_scc1 Lmb{T}
        s_lshl_b32 s44, s2, 2
        s_add_u32 s44, s44, s22
        s_lshl_b32 s44, s44, 3
        v_mov_b32 v2, s46
        v_mov_b32 v3, s47
        v_mov_b32 v4, 0
        buffer_store_dwordx2 v[2:3], v4, s[48:51], s44 offen
        Lmb{T}:""")
    a(f"v_lshrrev_b32 v6, 5, v1\nv_and_b32 v5, 31, v1\ns_mul_i32 s29, s22, 384\ns_add_u32 s29, s29, {RST}")
    if not isF:
        a(f"v_lshlrev_b32 v6, 5, v6\nv_add_u32 v6, {CSF}, v6\nv_lshlrev_b32 v7, 4, v1\nv_lshl_add_u32 v5, v5, 2, s29")
        a("s_lshl_b32 s28, s20, 2\ns_add_u32 s28, s28, s22\ns_mul_i32 s28, s28, 112\ns_mul_i32 s30, s21, 10\ns_add_u32 s28, s28, s30\ns_lshl_b32 s28, s28, 10")
        a("s_waitcnt lgkmcnt(0)\ns_barrier\ns_barrier\nds_read_b32 v76, v5\nds_read_b32 v72, v5 offset:256")
        def csr(b):
            C=24+16*(b&1)
            for u in range(2):
                for q in range(2): a(f"ds_read_b128 v[{C+8*u+4*q}:{C+8*u+4*q+3}], v6 offset:{b*128+u*64+q*16}")
        csr(0)
        for b in range(5):
            C=24+16*(b&1); D=80+16*b
            if b<4: csr(b+1); a("s_waitcnt lgkmcnt(4)")
            else: a("s_waitcnt lgkmcnt(0)")
            for j in range(0,16,2): a(f"v_pk_fma_f32 v[{D+j}:{D+j+1}], v[{C+j}:{C+j+1}], v[72:73], v[{D+j}:{D+j+1}] op_sel_hi:[1,0,1] neg_lo:[0,1,0] neg_hi:[0,1,0]")
            for j in range(0,16,2): a(f"v_pk_mul_f32 v[{D+j}:{D+j+1}], v[{D+j}:{D+j+1}], v[76:77] op_sel_hi:[1,0]")
            for j in range(8): a(f"v_cvt_pk_bf16_f32 v{D+j}, v{D+2*j}, v{D+2*j+1}")
            for j in range(8): a(f"v_pk_max_i16 v{D+j}, v{D+j}, 0")
            a(f"buffer_store_dwordx4 v[{D}:{D+3}], v7, s[16:19], s28 offen offset:{(b&1)*2048} STH")
            a(f"buffer_store_dwordx4 v[{D+4}:{D+7}], v7, s[16:19], s28 offen offset:{(b&1)*2048+1024} STH")
            if b&1: a("s_add_u32 s28, s28, 4096")
            if b==0: a("s_cmp_eq_u32 s21, 11\ns_cbranch_scc1 Lfin1")
    else:
        a(f"""v_lshl_add_u32 v4, v6, 5, s29
        v_lshlrev_b32 v3, 2, v5
        v_add_u32 v3, {CSF}, v3
        v_mul_u32_u24 v7, 272, v5
        v_lshl_add_u32 v7, v6, 4, v7
        s_lshl_b32 s30, s22, 6
        v_add_u32 v7, s30, v7
        v_lshrrev_b32 v8, 4, v1
        v_and_b32 v9, 15, v1
        v_lshlrev_b32 v9, 4, v9
        v_mul_u32_u24 v10, 4352, v8
        v_add_u32 v10, v10, v9
        v_mul_u32_u24 v8, 272, v8
        s_mul_i32 s30, s22, 10880
        v_add3_u32 v8, v8, v9, s30
        s_mul_i32 s28, s21, 696320
        s_lshl_b32 s30, s20, 8
        s_add_u32 s28, s28, s30
        s_mul_i32 s30, s22, 174080
        s_add_u32 s28, s28, s30
        s_waitcnt lgkmcnt(0)
        s_barrier""")
        for z in range(2):
            for u in range(2):
                for q in range(2): a(f"ds_read_b128 v[{24+16*z+8*u+4*q}:{24+16*z+8*u+4*q+3}], v4 offset:{z*128+u*64+q*16}")
        for b in range(5): a(f"ds_read_b32 v{60+2*b}, v3 offset:{b*128}")
        a("s_waitcnt lgkmcnt(0)")
        for b in range(5):
            D=80+16*b
            for j in range(0,16,2): a(f"v_pk_mul_f32 v[{D+j}:{D+j+1}], v[{D+j}:{D+j+1}], v[{24+j}:{25+j}]")
            for j in range(0,16,2): a(f"v_pk_fma_f32 v[{D+j}:{D+j+1}], v[{40+j}:{41+j}], v[{60+2*b}:{61+2*b}], v[{D+j}:{D+j+1}] op_sel_hi:[1,0,1] neg_lo:[0,1,0] neg_hi:[0,1,0]")
            for j in range(8): a(f"v_cvt_pk_bf16_f32 v{D+j}, v{D+2*j}, v{D+2*j+1}")
            a(f"ds_write_b128 v7, v[{D}:{D+3}] offset:{b*8704}\nds_write_b128 v7, v[{D+4}:{D+7}] offset:{b*8704+32}")
        a("s_waitcnt lgkmcnt(0)\ns_barrier")
        for q in range(10): a(f"ds_read_b128 v[{80+4*q}:{83+4*q}], v8 offset:{q*1088}")
        for q in range(10): a(f"s_waitcnt lgkmcnt({9-q})\nbuffer_store_dwordx4 v[{80+4*q}:{83+4*q}], v10, s[16:19], s28 offen STX\ns_add_u32 s28, s28, 17408")
    a("s_branch Lfin1")
def wtrans(a):
    a("s_load_dwordx4 s[24:27], s[0:1], 8\ns_waitcnt lgkmcnt(0)")
    srd(a,8,24,0,921600); srd(a,12,26,0,921600); srd(a,16,6,WT_OFF,WT_SZ)
    a("""s_lshr_b32 s24, s20, 2
    s_and_b32 s25, s20, 3
    v_lshlrev_b32 v2, 4, v1
    s_cmp_ge_u32 s3, 8
    s_cbranch_scc0 Lwt1""")
    pref(a,'w',0)
    a("""s_branch Lwt2
    Lwt1:
    s_lshr_b32 s28, s3, 2
    s_lshl_b32 s28, s28, 4
    s_and_b32 s29, s3, 3
    s_add_u32 s28, s28, s29
    s_lshl_b32 s29, s25, 2
    s_add_u32 s28, s28, s29
    s_lshl_b32 s28, s28, 2
    s_add_u32 s28, s28, s24
    s_mul_i32 s28, s28, 7200
    s_lshl_b32 s30, s3, 13
    s_add_u32 s29, s28, 4096""")
    for ri in range(2):
        for hf in range(2):
            a(f"s_add_u32 m0, s30, {ri*65536+hf*4096}\ns_nop 0")
            for q in range(4): a(f"buffer_load_dwordx4 v2, s[{8+4*ri}:{11+4*ri}], s{28+hf} offen offset:{q*1024} lds")
    a("""Lwt2:
    v_and_b32 v3, 15, v1
    v_lshrrev_b32 v4, 4, v1
    s_lshl_b32 s28, s3, 2
    v_add_u32 v4, s28, v4
    v_lshrrev_b32 v5, 1, v3
    v_mul_u32_u24 v5, 450, v5
    v_lshl_add_u32 v5, v4, 1, v5
    v_and_b32 v6, 1, v1
    v_lshl_add_u32 v5, v6, 15, v5
    v_add_u32 v6, 65536, v5
    v_lshlrev_b32 v7, 13, v4
    v_lshl_add_u32 v7, v3, 4, v7
    s_lshl_b32 s29, s24, 2
    s_add_u32 s29, s29, s25
    s_lshl_b32 s29, s29, 9
    s_mov_b32 s30, 0
    s_waitcnt vmcnt(0)
    s_barrier
    Lwt3:""")
    for j in range(8): a(f"ds_read_u16 v{16+j}, v5 offset:{(j&3)*8192+(j>>2)*3600}\nds_read_u16 v{24+j}, v6 offset:{(j&3)*8192+(j>>2)*3600}")
    a("""v_add_u32 v5, 96, v5
    v_add_u32 v6, 96, v6
    s_add_u32 s30, s30, 1
    s_waitcnt lgkmcnt(0)""")
    for j in range(8): a(f"v_lshl_or_b32 v{8+j}, v{24+j}, 16, v{16+j}")
    a("""buffer_store_dwordx4 v[8:11], v7, s[16:19], s29 offen STW
    buffer_store_dwordx4 v[12:15], v7, s[16:19], s29 offen offset:256 STW
    s_add_u32 s29, s29, 393216
    s_cmp_lt_u32 s30, 5
    s_cbranch_scc1 Lwt3""")
def k1():
    a=Asm()
    stamp(a,0)
    a(f"""s_cmp_ge_u32 s2, 256
    s_cbranch_scc1 Lend1
    s_load_dwordx2 s[8:9], s[0:1], 0
    s_load_dwordx2 s[12:13], s[0:1], 32
    s_load_dwordx2 s[6:7], s[0:1], 64
    v_lshrrev_b32 v2, 6, v0
    v_and_b32 v1, 63, v0
    v_readfirstlane_b32 s3, v2
    s_lshr_b32 s28, s2, 3
    s_and_b32 s20, s2, 3
    s_lshl_b32 s20, s20, 2
    s_and_b32 s29, s28, 3
    s_add_u32 s20, s20, s29
    s_lshr_b32 s21, s28, 2
    s_bfe_u32 s29, s2, 0x10002
    s_mul_i32 s30, s29, 6
    s_lshl_b32 s29, s29, 1
    s_add_u32 s29, s29, 6
    s_cmp_lt_u32 s21, 6
    s_cselect_b32 s29, s30, s29
    s_add_u32 s21, s21, s29
    s_mov_b32 s10, 0x1C0000
    s_mov_b32 s11, 0x20000
    s_mov_b32 s14, {448*3584}
    s_mov_b32 s15, 0x20000
    s_mov_b32 s38, {ST}
    s_mov_b32 s39, {-3*ST}
    s_and_b32 s22, s3, 3
    s_mov_b32 s23, 3584
    s_waitcnt lgkmcnt(0)
    s_cmp_eq_u32 s21, 15
    s_cbranch_scc1 Lwt
    s_cmp_ge_u32 s21, 12
    s_cbranch_scc1 LisF
    s_cmp_ge_u32 s3, 4
    s_cbranch_scc0 LgW
    s_branch Lload
    LisF:
    s_sub_u32 s21, s21, 12
    s_cmp_ge_u32 s3, 4
    s_cbranch_scc0 LgF
    s_mov_b32 s23, 896""")
    tab_srd(a,12,'k1')
    a("Lload:\ns_cmp_ge_u32 s3, 8\ns_cbranch_scc1 Lstat"); loader(a)
    a("Lstat:"); stats(a)
    a("LgW:"); gemm(a,False)
    a("LgF:"); gemm(a,True)
    a("Lwt:"); wtrans(a)
    a("Lfin1:"); flush(a,0,6,3)
    a("Lend1:\ns_endpgm")
    return a.text()
```
